```python
import torch

def _softmax(x, axis=-1):
    return torch.softmax(x, dim=axis)
def _gelu(x):
    return torch.nn.functional.gelu(x, approximate="tanh")
def _silu(x):
    return torch.nn.functional.silu(x)
def _sigmoid(x):
    return torch.sigmoid(x)
def _layernorm(x, axis=-1, eps=1e-5):
    m = x.mean(dim=axis, keepdim=True)
    v = x.var(dim=axis, keepdim=True, unbiased=False)
    return (x - m) / torch.sqrt(v + eps)
def _scatter_add(tgt, idx, src, axis=0):
    return tgt.clone().index_add_(axis, idx, src)
def _segment_sum(src, seg, n):
    out = torch.zeros((n,) + src.shape[1:], dtype=src.dtype)
    return out.index_add_(0, seg, src)
def _pad(x, pw):
    flat = tuple(v for pair in reversed(pw) for v in pair)
    return torch.nn.functional.pad(x, flat)

kernel_name = 'sequential_preLN__linear_kernel_hedgehog__swiglu_ffn__prompt'

def setup_inputs():

    _w = (lambda a: (lambda t: t.to(torch.bfloat16) if t.is_floating_point() else t)(torch.as_tensor(a)))
    def _A_setup():
        B, S, D, H = 1, 2048, 448, 16
        Dh = D // H
        return {
            "x": _w((lambda *s: torch.randn(*s, dtype=torch.bfloat16) * 0.05)(B, S, D)),
            "wqkv": _w((lambda *s: torch.randn(*s, dtype=torch.bfloat16) * 0.2)(D, 3 * D)),
            "w_phi": _w((lambda *s: torch.randn(*s, dtype=torch.bfloat16) * 0.2)(H, Dh, Dh) * (Dh ** -0.5)),
            "wo": _w((lambda *s: torch.randn(*s, dtype=torch.bfloat16) * 0.05)(D, D)),
        }
    _A_in = _A_setup()

    def _B_setup():
        B, S, D, F = 1, 2048, 448, 1792
        return {
            "x": _w((lambda *s: torch.randn(*s, dtype=torch.bfloat16) * 0.05)(B, S, D)),
            "w_gate": _w((lambda *s: torch.randn(*s, dtype=torch.bfloat16) * 0.05)(D, F)),
            "w_up": _w((lambda *s: torch.randn(*s, dtype=torch.bfloat16) * 0.05)(D, F)),
            "w_down": _w((lambda *s: torch.randn(*s, dtype=torch.bfloat16) * 0.05)(F, D)),
        }
    _B_in = _B_setup()

    return {
        "A_x": _A_in["x"],
        "A_wqkv": _A_in["wqkv"],
        "A_w_phi": _A_in["w_phi"],
        "A_wo": _A_in["wo"],
        "B_x": _B_in["x"],
        "B_w_gate": _B_in["w_gate"],
        "B_w_up": _B_in["w_up"],
        "B_w_down": _B_in["w_down"],
    }

def reference(A_x, A_wqkv, A_w_phi, A_wo, B_x, B_w_gate, B_w_up, B_w_down):
    def _A_ref(x, wqkv, w_phi, wo):
        B, S, D = x.shape
        H = 16; Dh = D // H
        qkv = (lambda x, *d: x.permute(*d))((x @ wqkv).reshape(B, S, 3, H, Dh), 2, 0, 3, 1, 4)
        q, k, v = qkv[0], qkv[1], qkv[2]
        pq = torch.einsum("bhsd,hdf->bhsf", q, w_phi)
        pk = torch.einsum("bhsd,hdf->bhsf", k, w_phi)
        phi_q = torch.concatenate([_softmax(pq, axis=-1), _softmax(-pq, axis=-1)], axis=-1)
        phi_k = torch.concatenate([_softmax(pk, axis=-1), _softmax(-pk, axis=-1)], axis=-1)
        kv = torch.einsum("bhsf,bhsd->bhfd", phi_k, v)
        z  = torch.einsum("bhsf->bhf", phi_k)
        num = torch.einsum("bhqf,bhfd->bhqd", phi_q, kv)
        den = torch.einsum("bhqf,bhf->bhq", phi_q, z)[..., None] + 1e-6
        o = num / den
        return (lambda x, *d: x.permute(*d))(o, 0, 2, 1, 3).reshape(B, S, D) @ wo

    def _B_ref(x, w_gate, w_up, w_down):
        g = _silu(x @ w_gate)
        u = x @ w_up
        return (g * u) @ w_down

    x = A_x
    h = x + _A_ref(_layernorm(x, axis=-1), A_wqkv, A_w_phi, A_wo)
    h2 = h + _B_ref(_layernorm(h, axis=-1), B_w_gate, B_w_up, B_w_down)
    return h2
```

```python
import re

class I:
    __slots__ = ("t", "tag", "cond", "cost")
    def __init__(self, t, tag=None, cond=False, cost=None):
        self.t = t
        self.tag = tag
        self.cond = cond
        self.cost = cost

TRANS = ("v_exp_f32", "v_rcp_f32", "v_rsq_f32", "v_log_f32", "v_sqrt_f32")

def regs_of(tok):
    tok = tok.strip()
    tok = tok.lstrip("-")
    m = re.fullmatch(r"abs\((.*)\)", tok)
    if m: tok = m.group(1)
    m = re.fullmatch(r"([vas])(\d+)", tok)
    if m: return {(m.group(1), int(m.group(2)))}
    m = re.fullmatch(r"([vas])\[(\d+):(\d+)\]", tok)
    if m: return {(m.group(1), k) for k in range(int(m.group(2)), int(m.group(3)) + 1)}
    if tok == "vcc": return {("s", "vcc")}
    if tok == "exec": return {("s", "exec")}
    if tok == "m0": return {("s", "m0")}
    return set()

def parse(t):
    t = t.split(";")[0].strip()
    if not t or t.endswith(":") or t.startswith("."):
        return (None, "none", set(), set(), {})
    sp = t.split(None, 1)
    op = sp[0]
    rest = sp[1] if len(sp) > 1 else ""
    ops = [x.strip() for x in rest.split(",")] if rest else []
    mods = ""
    if ops:
        last = ops[-1].split(None, 1)
        ops[-1] = last[0]
        mods = last[1] if len(last) > 1 else ""
    for k, o in enumerate(ops):
        if " " in o:
            a, b = o.split(None, 1)
            mods = b + "," + ",".join(ops[k + 1:]) + " " + mods
            ops = ops[:k] + [a]
            break
    R = [regs_of(o) for o in ops]
    U = lambda idx: set().union(*[R[i] for i in idx if i < len(R)]) if idx else set()
    n = len(R)
    if op.startswith("v_mfma"):
        return (op, "mfma", R[0], U([1, 2, 3]), {"A": R[1], "B": R[2], "C": R[3]})
    if op.startswith("buffer_"):
        if op in ("buffer_wbl2", "buffer_inv"):
            return (op, "vmem", set(), set(), {})
        lds = "lds" in mods.split()
        if lds:
            return (op, "vmem", set(), U(range(n)) | {("s", "m0")}, {"lds": True})
        if "load" in op:
            return (op, "vmem", R[0], U(range(1, n)), {})
        wide = op.endswith("x4") or op.endswith("x3")
        d = R[0] if ("atomic" in op and "sc0" in mods.split()) else set()
        return (op, "vmem", d, U(range(n)), {"store": R[0] if wide else set()})
    if op.startswith("global_"):
        if "load" in op:
            return (op, "vmem", R[0], U(range(1, n)), {})
        wide = op.endswith("x4") or op.endswith("x3")
        return (op, "vmem", set(), U(range(n)), {"store": R[1] if wide else set()})
    if op.startswith("ds_"):
        if "read" in op or "permute" in op or "swizzle" in op:
            return (op, "ds", R[0], U(range(1, n)), {})
        return (op, "ds", set(), U(range(n)), {})
    if op.startswith("s_"):
        if op.startswith(("s_load", "s_memtime", "s_memrealtime", "s_atomic", "s_buffer_load")):
            return (op, "smem", R[0] if R else set(), U(range(1, n)), {})
        if op.startswith(("s_cmp", "s_cbranch", "s_branch", "s_waitcnt", "s_barrier", "s_nop", "s_endpgm", "s_sleep", "s_setprio", "s_bitcmp")):
            return (op, "salu", set(), U(range(n)), {})
        d = set(R[0]) if R else set()
        if "saveexec" in op: d |= {("s", "exec")}
        return (op, "salu", d, U(range(1, n)), {})
    if op.startswith("v_"):
        base = re.sub(r"_e(32|64)$", "", op)
        if base.startswith("v_permlane") and "swap" in base:
            return (base, "valu", U([0, 1]), U([0, 1]), {"perm": True})
        if base.startswith("v_cmp"):
            return (base, "valu", R[0], U(range(1, n)), {"sw": True})
        if base in ("v_readfirstlane_b32", "v_readlane_b32"):
            return (base, "valu", R[0], U(range(1, n)), {"sw": True, "rl": True})
        if base in ("v_add_co_u32", "v_addc_co_u32", "v_sub_co_u32"):
            return (base, "valu", U([0, 1]), U(range(2, n)), {"sw": True})
        uses = U(range(1, n))
        if base in ("v_fmac_f32", "v_dot2c_f32_bf16", "v_writelane_b32"):
            uses |= R[0]
        ex = {}
        if base in TRANS: ex["trans"] = True
        if base.startswith("v_dot"): ex["dot"] = True; ex["AB"] = U([1, 2])
        if "dpp" in base or "row_" in mods or "quad_perm" in mods: ex["dpp"] = True
        if base == "v_cndmask_b32" and n == 3: uses |= {("s", "vcc")}
        return (base, "valu", R[0], uses, ex)
    raise ValueError("cannot parse: " + t)

def need_states(prev, cur):
    pop, pk, pd, pu, px = prev
    cop, ck, cd, cu, cx = cur
    n = 0
    vp = lambda S: {r for r in S if r[0] in "va"}
    sp = lambda S: {r for r in S if r[0] == "s"}
    if pk == "valu":
        wv = vp(pd); ws = sp(pd)
        if ck == "mfma" and wv & cu: n = max(n, 3 if px.get("dot") else 2)
        if ck == "valu":
            if cx.get("perm") and wv & cu: n = max(n, 2)
            if cx.get("rl") and wv & cu: n = max(n, 1)
            if cx.get("dpp") and wv & cu: n = max(n, 2)
            if px.get("trans") and wv & cu and not cx.get("trans"): n = max(n, 1)
            if px.get("trans") and wv & cu: n = max(n, 1)
            if ws & cu: n = max(n, 2)
            if px.get("dot"):
                if cop == pop:
                    if wv & cx.get("AB", set()): n = max(n, 3)
                elif wv & (cu | cd): n = max(n, 3)
        if ck in ("vmem", "ds") and px.get("dot") and wv & (cu | cd): n = max(n, 3)
        if ck in ("vmem", "ds") and px.get("trans") and wv & cu: n = max(n, 1)
        if ck == "vmem" and ws & cu: n = max(n, 5)
        if ck in ("salu", "smem") and ws & cu: n = max(n, 1)
    if pk == "mfma":
        D = pd
        if ck == "mfma":
            if D & (cx["A"] | cx["B"]): n = max(n, 12)
            if D & cx["C"] and cx["C"] != D: n = max(n, 10)
            if D & cd and cd != D: n = max(n, 10)
            if D & cd and cd == D and not (D & cx["C"]): n = max(n, 10)
        elif ck in ("valu", "vmem", "ds"):
            if D & (cu | cd): n = max(n, 12)
        if ck == "valu" and px["C"] & cd: n = max(n, 7)
    if pk == "salu":
        if ("s", "m0") in pd and ck == "vmem" and cx.get("lds"): n = max(n, 1)
    if pk == "vmem" and px.get("store"):
        if px["store"] & cd: n = max(n, 2)
    return n

class Asm:
    def __init__(self):
        self.L = []
        self.cond = False
    def __call__(self, text, tag=None, cost=None):
        for line in text.strip("\n").split("\n"):
            line = line.strip()
            if line:
                self.L.append(I(line, tag, self.cond, cost))
    def wvm(self, *tags): self.L.append(I(("WVM", tags), None, self.cond))
    def wlg(self, *tags): self.L.append(I(("WLG", tags), None, self.cond))
    def sub(self):
        a = Asm(); a.cond = self.cond; return a
    def add(self, other):
        self.L += other.L if isinstance(other, Asm) else other

def icost(i):
    if i.cost is not None: return i.cost
    if not isinstance(i.t, str): return 4
    op = i.t.split()[0]
    if op.startswith("v_mfma"): return 8
    if op.startswith(TRANS) or op.startswith("v_permlane"): return 8
    if op.endswith(":"): return 0
    return 4

def merge(main, fill, budget=32, start=0):
    main = main.L if isinstance(main, Asm) else main
    fill = list(fill.L if isinstance(fill, Asm) else fill)
    out = []
    groups = [[]]
    for i in main:
        if isinstance(i.t, str) and i.t.startswith("v_mfma"):
            groups.append([i])
        else:
            groups[-1].append(i)
    out += groups[0]
    fi = 0
    carry = 0
    for gi, g in enumerate(groups[1:]):
        out.append(g[0])
        used = sum(icost(x) for x in g) + carry
        rest = g[1:]
        ins = []
        if gi >= start:
            while fi < len(fill) and used + icost(fill[fi]) <= budget:
                used += icost(fill[fi]); ins.append(fill[fi]); fi += 1
        pre = [x for x in rest if isinstance(x.t, str) and not x.t.startswith(("s_waitcnt", "s_barrier"))]
        if len(pre) == len(rest):
            out += rest + ins
        else:
            k = 0
            while k < len(rest) and isinstance(rest[k].t, str) and not rest[k].t.startswith(("s_waitcnt", "s_barrier")): k += 1
            out += rest[:k] + ins + rest[k:]
        carry = 0
    out += fill[fi:]
    return out

def spread(main, fill, every):
    main = main.L if isinstance(main, Asm) else main
    out = []; fi = 0
    for k, i in enumerate(main):
        out.append(i)
        if (k + 1) % every == 0 and fi < len(fill):
            out += fill[fi].L if isinstance(fill[fi], Asm) else fill[fi]; fi += 1
    for f in fill[fi:]:
        out += f.L if isinstance(f, Asm) else f
    return out

def finalize(L, verbose=False):
    L = L.L if isinstance(L, Asm) else L
    vm = []; lg = []
    vmpos = {}; lgpos = {}
    vm_done = 0; lg_done = 0
    out = []
    for i in L:
        if not isinstance(i.t, str):
            kind, tags = i.t
            pos, q = (vmpos, vm) if kind == "WVM" else (lgpos, lg)
            p = max(pos[t] for t in tags)
            done = vm_done if kind == "WVM" else lg_done
            if p <= done: continue
            n = len(q) - int(p)
            mx = 63 if kind == "WVM" else 15
            n = min(n, mx)
            out.append(I(f"s_waitcnt {'vmcnt' if kind == 'WVM' else 'lgkmcnt'}({n})", None, i.cond))
            if not i.cond:
                if kind == "WVM": vm_done = len(q) - n
                else: lg_done = len(q) - n
            continue
        op, k, d, u, x = parse(i.t)
        if k == "vmem":
            if not i.cond: vm.append(i.tag)
            if i.tag is not None: vmpos[i.tag] = len(vm) if not i.cond else len(vm) + 0.5
        elif k == "ds":
            if not i.cond: lg.append(i.tag)
            if i.tag is not None: lgpos[i.tag] = len(lg)
        elif op == "s_waitcnt" and not i.cond:
            m = re.search(r"vmcnt\((\d+)\)", i.t)
            if m: vm_done = max(vm_done, len(vm) - int(m.group(1)))
            m = re.search(r"lgkmcnt\((\d+)\)", i.t)
            if m: lg_done = max(lg_done, len(lg) - int(m.group(1)))
        out.append(i)
    res = []
    hist = []
    nops = 0
    for i in out:
        cur = parse(i.t)
        if cur[1] == "none":
            res.append(i.t); continue
        need = 0
        dist = 0
        for (p, st, cond) in reversed(hist):
            r = need_states(p, cur) - dist
            if r > need: need = r
            if not cond or i.cond: dist += st
            if dist >= 12: break
        if need > 0:
            res.append(f"s_nop {need - 1}")
            hist.append((parse("s_nop 0"), need, i.cond)); nops += need
        res.append(i.t)
        st = 1
        if cur[0] == "s_nop": st = int(i.t.split()[1]) + 1
        hist.append((cur, st, i.cond))
        if len(hist) > 64: hist = hist[-40:]
    if verbose: print("inserted wait states:", nops, " instrs:", len(res))
    return "\n".join(("" if (t.endswith(":") or t.startswith(".")) else "    ") + t for t in res) + "\n"
```

```python
import sys
from asmlib import *

NAME = "sequential_preLN__linear_kernel_hedgehog__swiglu_ffn__prompt"
STAMPS = "--stamps" in sys.argv
STOP = None
for a_ in sys.argv:
    if a_.startswith("--stop="): STOP = int(a_.split("=")[1])
OUT = [a_ for a_ in sys.argv[1:] if not a_.startswith("--")]
OUT = OUT[0] if OUT else f"cdna_kernels/{NAME}.s"

CNT = 0
KVP = 0x10000
OB = KVP + (1 << 20)
HB = OB + (2 << 20)
ST = HB + (2 << 20)
ACT = ST + (1 << 18)
WS_USED = ACT + (7 << 20)
STAMP_OFF = 16 << 20
WS_SIZE = 32 << 20
C1, C2, C3, C4 = 0, 16, 32, 48
NINIT = 14
RS = 28672
R = [RS * i for i in range(5)]
SP = RS * 5
WPHI = SP + 4096
KVF = WPHI + 2048
STX = 163840 - 4096
LDS_BYTES = 163840
EXW = 6656
SPIN_MAX = 1 << 17
LOG2E = 1.4426950408889634

import struct
def f2u(x): return "0x%08x" % struct.unpack("<I", struct.pack("<f", x))[0]
def v(a, n=1): return f"v{a}" if n == 1 else f"v[{a}:{a+n-1}]"
def ag(a, n=1): return f"a{a}" if n == 1 else f"a[{a}:{a+n-1}]"
def s(a, n=1): return f"s{a}" if n == 1 else f"s[{a}:{a+n-1}]"
MF = "v_mfma_f32_32x32x16_bf16"

sW = 3
pX, pQKV, pPHI, pWO, pWG, pWU, pWD, pOUT, pDBG, pWS = 4, 6, 8, 10, 14, 16, 18, 20, 22, 24
t0, t1 = 26, 27
RX, RW, RP, RWS, RO, RG, RU = 28, 32, 36, 40, 44, 48, 52
sH, sRB, sROT, sI, sXCD = 56, 57, 58, 59, 60
sXB, sXO, sXE = 61, 62, 63
sWO = 64
sW1K = 71
sWB = 72
sTT, sCG, sNT = 73, 74, 75
sRB4, sFS, sROT4, sCT, sHALF = 76, 77, 78, 79, 80
sSELLO, sSELHI, sONES, sL2E = 81, 82, 83, 84
sCA = 86
sCV, sSPIN = 88, 89
t2, t3 = 12, 13
sO1, sO2 = 90, 91
sSTAMP = 92

a = Asm()
nstamp = [0]
def stamp(name):
    if not STAMPS: return
    k = nstamp[0]; nstamp[0] += 1
    a(f"s_memtime s[92:93]\ns_waitcnt lgkmcnt(0)\nv_writelane_b32 v255, s92, {k}")
    STAMP_NAMES.append(name)
STAMP_NAMES = []

def srd(r, p, size):
    a(f"s_mov_b32 {s(r)}, {s(p)}\ns_mov_b32 {s(r+1)}, {s(p+1)}\ns_mov_b32 {s(r+2)}, {size}\ns_mov_b32 {s(r+3)}, 0x20000")

lab = [0]
def newlab(p):
    lab[0] += 1
    return f"L_{p}_{lab[0]}"

def wave0(body):
    l = newlab("w0")
    a(f"s_cmp_lg_u32 {s(sW)}, 0\ns_cbranch_scc1 {l}")
    a.cond = True
    body()
    a.cond = False
    a(f"{l}:")

def cnt_addr(base, idx_sgpr, extra=0):
    a(f"s_lshl_b32 {s(t0)}, {s(idx_sgpr)}, 7\ns_add_u32 {s(t0)}, {s(t0)}, {CNT + (base + extra) * 128}")
    a(f"s_add_u32 {s(sCA)}, {s(pWS)}, {s(t0)}\ns_addc_u32 {s(sCA+1)}, {s(pWS+1)}, 0")

def signal(base, idx_sgpr):
    def body():
        cnt_addr(base, idx_sgpr)
        a(f"s_mov_b32 {s(sCV)}, 1\ns_atomic_add {s(sCV)}, {s(sCA,2)}, 0")
    wave0(body)

def spin(addr, n, load=False):
    lp, dn = newlab("poll"), newlab("done")
    rd = f"s_load_dword {s(sCV)}, {s(addr,2)}, 0 glc" if load else f"s_mov_b32 {s(sCV)}, 0\ns_atomic_add {s(sCV)}, {s(addr,2)}, 0 glc"
    a(f"""s_mov_b32 {s(sSPIN)}, 0
s_waitcnt lgkmcnt(0)
{lp}:
{rd}
s_add_u32 {s(sSPIN)}, {s(sSPIN)}, 1
s_waitcnt lgkmcnt(0)
s_cmp_ge_u32 {s(sCV)}, {n}
s_cbranch_scc1 {dn}
s_cmp_lt_u32 {s(sSPIN)}, {SPIN_MAX}
s_cbranch_scc1 {lp}
{dn}:""")

def poll(base, idx_sgpr, n):
    def body():
        cnt_addr(base, idx_sgpr)
        spin(sCA, n)
    wave0(body)

vL = 0
vL16 = 1
vXO = 2
vAX = 6
vWOF = 10
vAW = 11
vAWK = 12
vMLO = 13
vMF = 14
vT = 15
XF = 16
WR = 128
AK = 160
AV = 176
PK = 192
EM = 208
PH = 224
M = 240
WP = ag(232)

def p1():
    a(f"""s_cmp_ge_u32 s2, 256
s_cbranch_scc1 L_end
s_load_dwordx16 s[4:19], s[0:1], 0
s_load_dwordx4 s[20:23], s[0:1], 64
s_load_dwordx2 s[24:25], s[0:1], 80
v_lshrrev_b32 v1, 6, v0
v_and_b32 v0, 63, v0
v_readfirstlane_b32 {s(sW)}, v1
s_and_b32 {s(sXCD)}, s2, 7
s_lshr_b32 {s(sI)}, s2, 3
s_and_b32 {s(t0)}, {s(sI)}, 3
s_lshr_b32 {s(t1)}, {s(sI)}, 2
s_lshr_b32 {s(sRB)}, {s(sXCD)}, 2
s_lshl_b32 {s(sRB)}, {s(sRB)}, 3
s_add_u32 {s(sRB)}, {s(sRB)}, {s(t1)}
s_lshl_b32 {s(sROT)}, {s(t0)}, 1
s_add_u32 {s(sROT)}, {s(sROT)}, {s(t1)}
s_sub_u32 {s(sH)}, {s(sROT)}, 7
s_cmp_ge_u32 {s(sROT)}, 7
s_cselect_b32 {s(sROT)}, {s(sH)}, {s(sROT)}
s_and_b32 {s(sH)}, {s(sXCD)}, 3
s_lshl_b32 {s(sH)}, {s(sH)}, 2
s_add_u32 {s(sH)}, {s(sH)}, {s(t0)}
s_lshl_b32 {s(sXB)}, {s(sRB)}, 2
s_add_u32 {s(sXB)}, {s(sXB)}, {s(sW)}
s_mul_i32 {s(sXB)}, {s(sXB)}, {RS}
s_mul_i32 {s(sWB)}, {s(sW)}, {RS}
s_lshl_b32 {s(sXO)}, {s(sROT)}, 7
s_add_u32 {s(sXO)}, {s(sXO)}, {s(sXB)}
s_add_u32 {s(sXE)}, {s(sXB)}, 896
v_lshrrev_b32 v6, 3, v0
v_and_b32 v7, 7, v0
v_lshrrev_b32 v8, 4, v0
v_xor_b32 v7, v7, v8
v_lshlrev_b32 v7, 4, v7
v_mul_u32_u24 v6, 896, v6
v_add_u32 v2, v6, v7
v_xor_b32 v3, 64, v2
v_add_u32 v3, 6144, v3
v_add_u32 v4, 12288, v2
v_add_u32 v5, 12288, v3
v_lshlrev_b32 {v(vL16)}, 4, v0
s_waitcnt lgkmcnt(0)""")
    if STAMPS:
        a("v_mov_b32 v255, 0\ns_memrealtime s[92:93]\ns_waitcnt lgkmcnt(0)\nv_writelane_b32 v255, s92, 63")
    stamp("start")
    srd(RX, pX, 2048 * 896)

    def xdma(c):
        q = a.sub()
        q(f"s_add_u32 m0, {s(sWB)}, {c*4096}")
        if c > 0:
            q(f"s_add_u32 {s(sXO)}, {s(sXO)}, 128\ns_cmp_eq_u32 {s(sXO)}, {s(sXE)}\ns_cselect_b32 {s(sXO)}, {s(sXB)}, {s(sXO)}")
        for j in range(4):
            q(f"buffer_load_dwordx4 {v(vXO+j)}, {s(RX,4)}, {s(sXO)} offen offset:{1024*j} lds", tag=f"X{c}")
        return q
    for c in range(3): a.add(xdma(c))

    srd(RW, pQKV, 448 * 2688); srd(RP, pPHI, 16 * 1568); srd(RWS, pWS, WS_SIZE)
    l = newlab("init")
    a(f"""v_mov_b32 {v(M)}, 0
v_mov_b32 {v(M+1)}, 0
v_mov_b32 {v(M+2)}, 0
v_mov_b32 {v(M+3)}, 0
s_lshl_b32 {s(t0)}, s2, 10
s_cmp_lt_u32 s2, {NINIT}
s_cselect_b32 {s(sO1)}, {s(sW)}, 0
s_cmp_eq_u32 {s(sO1)}, 3
s_cbranch_scc0 {l}""")
    a.cond = True
    a(f"buffer_store_dwordx4 {v(M,4)}, {v(vL16)}, {s(RWS,4)}, {s(t0)} offen sc1", tag="INIT")
    a.cond = False
    a(f"{l}:")
    a(f"""s_lshl_b32 {s(sW1K)}, {s(sW)}, 10
s_mul_i32 {s(t0)}, {s(sW)}, {16*2688}
s_mul_i32 {s(t1)}, {s(sH)}, 56
s_add_u32 {s(t0)}, {s(t0)}, {s(t1)}
s_add_u32 {s(t1)}, {s(t0)}, {7*64*2688}
s_mul_i32 {s(sWO)}, {s(sROT)}, {64*2688}
s_add_u32 {s(sWO)}, {s(sWO)}, {s(t0)}""")
    for c in range(1, 7):
        a(f"s_add_u32 {s(sWO+c)}, {s(sWO+c-1)}, {64*2688}\ns_cmp_eq_u32 {s(sWO+c)}, {s(t1)}\ns_cselect_b32 {s(sWO+c)}, {s(t0)}, {s(sWO+c)}")
    a(f"""s_mov_b32 {s(sONES)}, 0x3f803f80
s_mov_b32 {s(sSELLO)}, 0x00003f80
s_mov_b32 {s(sSELHI)}, 0x3f800000
s_mov_b32 {s(sL2E)}, {f2u(LOG2E)}
v_and_b32 v6, 31, v0
v_lshrrev_b32 v7, 5, v0
v_bfe_u32 v8, v0, 1, 3
v_xor_b32 v8, v8, v7
v_lshlrev_b32 v8, 4, v8
v_lshl_add_u32 v6, v6, 7, v8
v_add_u32 {v(vAX)}, {s(sWB)}, v6
v_add_u32 {v(vMLO)}, -1, v7
v_and_b32 {v(vMF)}, 1.0, {v(vMLO)}
v_lshrrev_b32 {v(vWOF)}, 2, v0
v_mul_u32_u24 {v(vWOF)}, 2688, {v(vWOF)}
v_and_b32 v8, 3, v0
v_lshlrev_b32 v9, 4, v8
v_min_u32 v9, 40, v9
v_add_u32 {v(vWOF)}, {v(vWOF)}, v9
v_bfe_u32 v9, v0, 4, 1
v_lshl_add_u32 v8, v9, 2, v8
v_bfe_u32 v9, v0, 2, 2
v_lshl_add_u32 {v(M+4)}, v7, 2, v9
v_mul_u32_u24 {v(M+4)}, 56, {v(M+4)}
v_min_u32 {v(M+5)}, 6, v8
v_lshl_add_u32 {v(M+4)}, {v(M+5)}, 3, {v(M+4)}
v_add_u32 {v(M+4)}, {WPHI}, {v(M+4)}
v_lshl_add_u32 v9, v7, 3, v9
v_xor_b32 {v(M+5)}, 1, v8
v_cmp_le_u32 vcc, 6, v8
v_cndmask_b32 v8, v8, {v(M+5)}, vcc
v_lshlrev_b32 v8, 3, v8
v_lshl_add_u32 {v(vAW)}, v9, 6, v8
v_add_u32 {v(vAWK)}, {R[4]}, {v(vAW)}
v_xor_b32 {v(vAX+1)}, 32, {v(vAX)}
v_xor_b32 {v(vAX+2)}, 64, {v(vAX)}
v_xor_b32 {v(vAX+3)}, 96, {v(vAX)}""")
    def wdma(m, c, region):
        mcol = {"q": 0, "k": 896, "v": 1792}[m]
        q = a.sub()
        q(f"s_add_u32 m0, {s(sW1K)}, {region + c*4096 - mcol}" if region + c*4096 - mcol >= 0 else
          f"s_add_u32 m0, {s(sW1K)}, {region + c*4096}\ns_add_u32 {s(t0)}, {s(sWO+c)}, {mcol}")
        if region + c*4096 - mcol >= 0:
            q(f"buffer_load_dwordx4 {v(vWOF)}, {s(RW,4)}, {s(sWO+c)} offen offset:{mcol} lds", tag=f"{m}{c}")
        else:
            q(f"buffer_load_dwordx4 {v(vWOF)}, {s(RW,4)}, {s(t0)} offen lds", tag=f"{m}{c}")
        return q
    def pdma():
        q = a.sub()
        q(f"""s_and_b32 {s(t0)}, {s(sW1K)}, 1024
s_add_u32 m0, {s(t0)}, {WPHI}
s_mul_i32 {s(t1)}, {s(sH)}, 1568
s_add_u32 {s(t0)}, {s(t0)}, {s(t1)}""")
        q(f"buffer_load_dwordx4 {v(vL16)}, {s(RP,4)}, {s(t0)} offen lds", tag="phi")
        return q
    for c in range(7):
        a.wvm(f"X{c}")
        for q in range(4):
            a(f"ds_read_b128 {v(XF+16*c+4*q,4)}, {v(vAX+q)} offset:{c*4096}", tag=f"xr{c}")
        if c < 4: a.add(xdma(c + 3))
        elif c == 4:
            a.add(pdma())
            for k in range(3): a.add(wdma("k", k, R[4]))
        elif c == 5:
            for k in range(3, 7): a.add(wdma("k", k, R[4]))
        if c == 3:
            l = newlab("init2")
            a(f"s_cmp_eq_u32 {s(sO1)}, 3\ns_cbranch_scc0 {l}")
            a.cond = True
            a(f"s_mov_b32 {s(sCV)}, 1\ns_atomic_add {s(sCV)}, {s(pDBG,2)}, 0")
            a.cond = False
            a(f"{l}:")
        a.wlg(f"xr{c}")
        if c == 6:
            a("s_barrier")
            for k in range(4): a.add(wdma("v", k, R[0]))
        for r in range(16):
            a(f"v_dot2c_f32_bf16 {v(M)}, {s(sONES)}, {v(XF+16*c+r)}\nv_dot2c_f32_bf16 {v(M+1)}, {v(XF+16*c+r)}, {v(XF+16*c+r)}")
    stamp("x_done")
    a(f"""v_permlane32_swap_b32 {v(M)}, {v(M+1)}
v_add_f32 {v(M)}, {v(M)}, {v(M+1)}
v_mul_f32 {v(M)}, {f2u(1/448)}, {v(M)}
v_mov_b32 {v(M+1)}, {v(M)}
v_permlane32_swap_b32 {v(M)}, {v(M+1)}
v_fma_f32 {v(M+1)}, -{v(M)}, {v(M)}, {v(M+1)}
v_max_f32 {v(M+1)}, 0, {v(M+1)}
v_add_f32 {v(M+1)}, {f2u(1e-5)}, {v(M+1)}
v_rsq_f32 {v(M+1)}, {v(M+1)}
v_cvt_pk_bf16_f32 {v(M+1)}, {v(M+1)}, {v(M+1)}
v_and_b32 {v(M+2)}, 0xffff0000, {v(M+1)}
v_and_b32 {v(M+1)}, 0xffff, {v(M+1)}
v_mul_f32 {v(M)}, {v(M)}, {v(M+2)}
v_sub_f32 {v(M)}, 0, {v(M)}""")
    nrm = a.sub()
    TP = PK
    for r in range(112 + 2):
        if r < 112:
            k = TP + 2 * (r % 4)
            nrm(f"v_dot2_f32_bf16 {v(k)}, {v(XF+r)}, {v(M+1)}, {v(M)}\nv_dot2_f32_bf16 {v(k+1)}, {v(XF+r)}, {v(M+2)}, {v(M)}")
        if r >= 2:
            k = TP + 2 * ((r - 2) % 4)
            nrm(f"v_cvt_pk_bf16_f32 {v(XF+r-2)}, {v(k)}, {v(k+1)}")
    fill = [wdma("v", k, R[0]) for k in range(4, 7)] + [wdma("q", k, R[1]) for k in range(7)]
    a.add(spread(nrm, fill, 30))
    stamp("norm_done")

    def gemm(m, addr, base, acc, x_is_b=True):
        g = a.sub()
        def rd(sp):
            for u in range(2):
                g(f"ds_read_b64_tr_b16 {v(WR+4*(sp%8)+2*u,2)}, {v(addr)} offset:{base+sp*1024+u*256}", tag=f"{m}f{sp}")
        PD = 5
        for sp in range(PD): rd(sp)
        for sp in range(28):
            g.wlg(f"{m}f{sp}")
            wf, xf = v(WR+4*(sp%8),4), v(XF+4*sp,4)
            A, B = (wf, xf) if x_is_b else (xf, wf)
            g(f"{MF} {v(acc,16)}, {A}, {B}, {v(acc,16) if sp else 0}")
            if sp + PD < 28: rd(sp + PD)
        return g

    WPF = M + 6
    def softmax(acc, plain):
        hd = a.sub(); b = a.sub()
        for k in range(8): hd(f"v_cvt_pk_bf16_f32 {v(EM+k)}, {v(acc+2*k)}, {v(acc+2*k+1)}")
        hd(f"{MF} {v(PK,16)}, {v(WPF,4)}, {v(EM,4)}, 0")
        hd(f"{MF} {v(PK,16)}, {v(WPF+4,4)}, {v(EM+4,4)}, {v(PK,16)}")
        mx, mn, u0, u1 = acc, acc + 1, acc + 2, acc + 3
        b(f"v_max3_f32 {v(mx)}, {v(PK)}, {v(PK+1)}, {v(PK+2)}\nv_min3_f32 {v(mn)}, {v(PK)}, {v(PK+1)}, {v(PK+2)}")
        for k in range(3, 15, 2):
            b(f"v_max3_f32 {v(mx)}, {v(mx)}, {v(PK+k)}, {v(PK+k+1)}\nv_min3_f32 {v(mn)}, {v(mn)}, {v(PK+k)}, {v(PK+k+1)}")
        b(f"""v_max_f32 {v(mx)}, {v(mx)}, {v(PK+15)}
v_min_f32 {v(mn)}, {v(mn)}, {v(PK+15)}
v_sub_f32 {v(mn)}, 0, {v(mn)}
v_permlane32_swap_b32 {v(mx)}, {v(mn)}
v_max_f32 {v(mx)}, {v(mx)}, {v(mn)}
v_mul_f32 {v(mx)}, {f2u(-LOG2E)}, {v(mx)}
v_mov_b32 {v(mn)}, {v(mx)}
v_permlane32_swap_b32 {v(mx)}, {v(mn)}""")
        for k in range(16):
            b(f"v_fma_f32 {v(EM+k)}, -{v(PK+k)}, {s(sL2E)}, {v(mn)}\nv_fma_f32 {v(PK+k)}, {v(PK+k)}, {s(sL2E)}, {v(mx)}")
        for k in range(16):
            b(f"v_exp_f32 {v(PK+k)}, {v(PK+k)}\nv_exp_f32 {v(EM+k)}, {v(EM+k)}")
        for (E, d0, d1) in ((PK, mx, u0), (EM, mn, u1)):
            b(f"v_add_f32 {v(d0)}, {v(E)}, {v(E+1)}\nv_add_f32 {v(d1)}, {v(E+12)}, {v(E+13)}")
        for k in range(2, 12):
            b(f"v_add_f32 {v(mx)}, {v(mx)}, {v(PK+k)}\nv_add_f32 {v(mn)}, {v(mn)}, {v(EM+k)}")
        for k in (14, 15):
            b(f"v_add_f32 {v(u0)}, {v(u0)}, {v(PK+k)}\nv_add_f32 {v(u1)}, {v(u1)}, {v(EM+k)}")
        b(f"""v_fmac_f32 {v(mx)}, {v(u0)}, {v(vMF)}
v_fmac_f32 {v(mn)}, {v(u1)}, {v(vMF)}
v_permlane32_swap_b32 {v(mx)}, {v(mn)}
v_add_f32 {v(mx)}, {v(mx)}, {v(mn)}
v_rcp_f32 {v(mx)}, {v(mx)}
v_mov_b32 {v(mn)}, {v(mx)}
v_permlane32_swap_b32 {v(mx)}, {v(mn)}""")
        for (E, rr, o) in ((PK, mx, PH), (EM, mn, PH + 8)):
            for k in range(8):
                b(f"v_mul_f32 {v(E+2*k)}, {v(E+2*k)}, {v(rr)}\nv_mul_f32 {v(E+2*k+1)}, {v(E+2*k+1)}, {v(rr)}")
                b(f"v_cvt_pk_bf16_f32 {v(o+k)}, {v(E+2*k)}, {v(E+2*k+1)}")
        return hd, b

    a.wvm("k6", "phi"); a("s_barrier")
    for sf in range(2):
        for u in range(2):
            a(f"ds_read_b64_tr_b16 {v(WPF+4*sf+2*u,2)}, {v(M+4)} offset:{(16*sf+8*u)*56}", tag="wp")
    aE, aEV, aT, aVR = vAX, vAX + 1, vAX + 2, vAX + 3
    pre = a.sub()
    pre(f"""s_mul_i32 {s(t0)}, {s(sW)}, {EXW}
s_add_u32 {s(t0)}, {s(t0)}, {R[4]}
v_lshrrev_b32 v2, 5, v0
v_lshl_add_u32 v3, v2, 6, {v(vL16)}
v_add_u32 {v(aE)}, {s(t0)}, v3
v_add_u32 {v(aEV)}, {s(t0)}, {v(vL16)}
v_add_u32 {v(aVR)}, {R[4]}, {v(vL16)}
s_lshr_b32 {s(t0)}, {s(sW)}, 1
s_mul_i32 {s(t0)}, {s(t0)}, 2304
s_add_u32 {s(t0)}, {s(t0)}, {R[4]}
v_bfe_u32 v3, v0, 2, 2
v_lshl_add_u32 v2, v2, 2, v3
v_lshlrev_b32 v2, 4, v2
v_bfe_u32 v3, v0, 4, 1
v_mul_u32_u24 v3, 1152, v3
v_add_u32 v2, v2, v3
v_and_b32 v3, 1, v0
v_mul_u32_u24 v3, 576, v3
v_add_u32 v2, v2, v3
v_bfe_u32 v3, v0, 1, 1
v_lshl_add_u32 v2, v3, 3, v2
v_add_u32 {v(aT)}, {s(t0)}, v2
v_and_b32 {v(WPF+6)}, {v(WPF+6)}, {v(vMLO)}
v_and_b32 {v(WPF+7)}, {v(WPF+7)}, {v(vMLO)}""")
    a.add(merge(gemm("k", vAWK, 0, AK), pre, start=2))
    stamp("k_done")
    hd, body = softmax(AK, True)
    a.add(hd)
    a.wvm("v6"); a("s_barrier")
    a.add(merge(gemm("v", vAW, R[0], AV, x_is_b=False), body, start=1))
    for k in (6, 7, 14, 15): a(f"v_and_b32 {v(PH+k)}, {v(PH+k)}, {v(vMLO)}")
    for f in range(4): a(f"ds_write_b128 {v(aE)}, {v(PH+4*f,4)} offset:{f*1152}")
    a(f"v_and_b32 v2, 31, v0\nv_cmp_eq_u32 vcc, 28, v2\nv_mov_b32 v3, {s(sONES)}")
    for k in range(8): a(f"v_cvt_pk_bf16_f32 {v(AV+k)}, {v(AV+2*k)}, {v(AV+2*k+1)}")
    for k in range(8): a(f"v_cndmask_b32 {v(AV+k)}, {v(AV+k)}, v3, vcc")
    for f in range(2): a(f"ds_write_b128 {v(aEV)}, {v(AV+4*f,4)} offset:{4608+f*1024}")
    stamp("phik_done")
    a("s_waitcnt lgkmcnt(0)\ns_barrier")
    for ks in range(8):
        wq, sq = ks // 2, ks % 2
        for u in range(2):
            a(f"ds_read_b64_tr_b16 {v(WR+4*ks+2*u,2)}, {v(aT)} offset:{wq*EXW+(16*sq+8*u)*16}", tag=f"e{ks}")
        a(f"ds_read_b128 {v(PK+4*ks,4)}, {v(aVR)} offset:{wq*EXW+4608+sq*1024}", tag=f"e{ks}")
        if ks >= 3:
            a.wlg(f"e{ks-3}"); a(f"{MF} {v(AV,16)}, {v(WR+4*(ks-3),4)}, {v(PK+4*(ks-3),4)}, {v(AV,16) if ks>3 else 0}")
    a(f"""s_lshl_b32 {s(t0)}, {s(sH)}, 4
s_add_u32 {s(t0)}, {s(t0)}, {s(sRB)}
s_lshl_b32 {s(t0)}, {s(t0)}, 12
s_add_u32 {s(t0)}, {s(t0)}, {s(sW1K)}
s_add_u32 {s(sO1)}, {s(t0)}, {KVP}
s_bitcmp1_b32 {s(sW)}, 0
s_cselect_b64 vcc, -1, 0""")
    for ks in range(5, 8):
        a.wlg(f"e{ks}"); a(f"{MF} {v(AV,16)}, {v(WR+4*ks,4)}, {v(PK+4*ks,4)}, {v(AV,16)}")
    for k in range(8): a(f"v_cvt_pk_bf16_f32 {v(AV+k)}, {v(AV+2*k)}, {v(AV+2*k+1)}")
    for k in range(4): a(f"v_cndmask_b32 {v(AV+k)}, {v(AV+k)}, {v(AV+4+k)}, vcc")
    a(f"buffer_store_dwordx4 {v(AV,4)}, {v(vL16)}, {s(RWS,4)}, {s(sO1)} offen sc1", tag="kvst")
    stamp("kv_stored")
    roles34()
    for c, reg in ((0, 2), (1, 3), (2, 0)):
        for g in chunk_dma("O", c, R[reg]): a.add(g)
    wave0(lambda: spin(pDBG, NINIT, load=True))
    a.wvm("kvst"); a("s_barrier")
    signal(C1, sH)
    stamp("sig1")
    for g in chunk_dma("O", 3, R[4]): a.add(g)
    XR = AV
    a(f"""v_and_b32 v2, 31, v0
v_mul_u32_u24 v2, 896, v2
v_lshrrev_b32 v3, 5, v0
v_lshl_add_u32 v2, v3, 3, v2
s_mul_i32 {s(t0)}, {s(sTT)}, {RS}
s_lshl_b32 {s(t1)}, {s(sNT)}, 6
s_add_u32 {s(t0)}, {s(t0)}, {s(t1)}""")
    for j in range(4):
        a(f"buffer_load_dwordx2 {v(XR+2*j,2)}, v2, {s(RX,4)}, {s(t0)} offen offset:{16*j}", tag="xres")
    a.add(gemm("q", vAW, R[1], AK))
    hd, body = softmax(AK, False)
    a.add(hd); a.add(body)
    stamp("phiq_done")

vPO, vPG = 4, 5
vAP, vAP2, vAPC, vAPC2 = 6, 7, 8, 9
vAP4, vAPC4 = 11, 12
sOB, sGB = 64, 65
def roles34():
    a(f"""s_lshl_b32 {s(sTT)}, {s(sXCD)}, 3
s_lshr_b32 {s(t0)}, {s(sI)}, 2
s_add_u32 {s(sTT)}, {s(sTT)}, {s(t0)}
s_and_b32 {s(sCG)}, {s(sI)}, 3
s_and_b32 {s(t0)}, {s(sW)}, 1
s_cmp_eq_u32 {s(sCG)}, 3
s_cselect_b32 {s(t0)}, {s(t0)}, {s(sW)}
s_cselect_b32 {s(t1)}, 7, 15
s_lshl_b32 {s(sNT)}, {s(sCG)}, 2
s_add_u32 {s(sNT)}, {s(sNT)}, {s(t0)}
v_lshrrev_b32 v2, 4, v0
v_lshlrev_b32 v3, 2, v2
v_xor_b32 v3, v3, v0
v_and_b32 {v(vPO)}, {s(t1)}, v3
v_and_b32 {v(vPG)}, 15, v3
v_lshlrev_b32 {v(vPO)}, 4, {v(vPO)}
v_lshlrev_b32 {v(vPG)}, 4, {v(vPG)}
v_mul_u32_u24 v3, 896, v2
v_add_u32 {v(vPO)}, {v(vPO)}, v3
v_mul_u32_u24 v3, 3584, v2
v_add_u32 {v(vPG)}, {v(vPG)}, v3
s_mul_i32 {s(sOB)}, {s(sW)}, {4*896}
s_lshl_b32 {s(t0)}, {s(sCG)}, 8
s_add_u32 {s(sOB)}, {s(sOB)}, {s(t0)}
s_min_u32 {s(t0)}, {s(sI)}, 27
s_mul_i32 {s(sROT4)}, {s(t0)}, 37
s_lshr_b32 {s(sROT4)}, {s(sROT4)}, 8
s_mul_i32 {s(t1)}, {s(sROT4)}, 7
s_sub_u32 {s(sCT)}, {s(t0)}, {s(t1)}
s_and_b32 {s(sHALF)}, {s(sXCD)}, 1
s_mul_i32 {s(sFS)}, {s(sHALF)}, 7
s_add_u32 {s(sFS)}, {s(sFS)}, {s(sCT)}
s_lshr_b32 {s(sRB4)}, {s(sXCD)}, 1
s_lshl_b32 {s(sRB4)}, {s(sRB4)}, 2
s_add_u32 {s(sRB4)}, {s(sRB4)}, {s(sROT4)}
s_mul_i32 {s(sGB)}, {s(sW)}, {4*3584}
s_lshl_b32 {s(t0)}, {s(sFS)}, 8
s_add_u32 {s(sGB)}, {s(sGB)}, {s(t0)}""")
    srd(RO, pWO, 448 * 896); srd(RG, pWG, 448 * 3584); srd(RU, pWU, 448 * 3584)

def chunk_dma(m, c, region):
    out = []
    pitch = 896 if m == "O" else 3584
    for j in range(7):
        q = a.sub()
        if j == 0:
            if m == "O":
                q(f"s_add_u32 {s(sO2)}, {s(sOB)}, {c*112*pitch}")
            else:
                q(f"s_add_u32 {s(sO2)}, {s(sROT4)}, {c}\ns_and_b32 {s(sO2)}, {s(sO2)}, 3\ns_mul_i32 {s(sO2)}, {s(sO2)}, {112*pitch}\ns_add_u32 {s(sO2)}, {s(sO2)}, {s(sGB)}")
        q(f"s_add_u32 m0, {s(sW1K)}, {region + j*4096}")
        if j > 0: q(f"s_add_u32 {s(sO2)}, {s(sO2)}, {16*pitch}")
        rs = {"O": RO, "G": RG, "U": RU}[m]
        q(f"buffer_load_dwordx4 {v(vPO if m == 'O' else vPG)}, {s(rs,4)}, {s(sO2)} offen lds", tag=f"{m}{c}")
        out.append(q)
    return out

def chunk_addrs():
    a(f"""v_bfe_u32 v2, v0, 2, 2
v_xor_b32 v3, {s(sW)}, v2
v_lshlrev_b32 v3, 6, v3
v_lshl_add_u32 v3, v2, 8, v3
v_bfe_u32 v2, v0, 4, 1
v_lshl_add_u32 v3, v2, 5, v3
v_and_b32 v2, 3, v0
v_lshl_add_u32 {v(vAPC)}, v2, 3, v3
v_lshrrev_b32 v2, 5, v0
v_lshl_add_u32 {v(vAP)}, v2, 10, {v(vAPC)}
v_add_u32 {v(vAP2)}, {R[2]}, {v(vAP)}
v_add_u32 {v(vAPC2)}, {R[2]}, {v(vAPC)}
v_add_u32 {v(vAP4)}, {R[4]}, {v(vAP)}
v_add_u32 {v(vAPC4)}, {R[4]}, {v(vAPC)}""")

WOF = 16
def chunk_read(m, c, reg):
    q = a.sub()
    ad, adc, off = {0: (vAP, vAPC, 0), 1: (vAP, vAPC, RS), 2: (vAP2, vAPC2, 0), 3: (vAP2, vAPC2, RS), 4: (vAP4, vAPC4, 0)}[reg]
    if m == "O":
        for hl in range(4):
            for sf in range(2):
                for u in range(2):
                    d = WOF + 4 * (8 * c + 2 * hl + sf) + 2 * u
                    q(f"ds_read_b64_tr_b16 {v(d,2)}, {v(adc if (sf and u) else ad)} offset:{off + (28*hl+16*sf+8*u)*256}", tag=f"r{m}{c}")
    else:
        base = 0 if m == "G" else 112
        for sl in range(7):
            for u in range(2):
                q(f"ds_read_b64_tr_b16 {ag(base+4*(7*c+sl)+2*u,2)}, {v(ad)} offset:{off + (16*sl+8*u)*256}", tag=f"r{m}{c}")
    return q

CSG, CSU = 224, 228
def colsum(m, acc, ones):
    base, dst = (0, CSG) if m == "G" else (112, CSU)
    for k in range(4): a(f"v_mov_b32 {v(ones+k)}, {s(sONES)}")
    for sp in range(28):
        a(f"{MF} {v(acc,16)}, {v(ones,4)}, {ag(base+4*sp,4)}, {v(acc,16) if sp else 0}")
    a(f"""v_cvt_pk_bf16_f32 {v(ones)}, {v(acc)}, {v(acc)}
v_and_b32 {v(ones+1)}, 0xffff0000, {v(ones)}
v_sub_f32 {v(ones+1)}, {v(acc)}, {v(ones+1)}
v_cvt_pk_bf16_f32 {v(ones+1)}, {v(ones+1)}, 0
v_and_b32 {v(ones)}, {v(ones)}, {v(vMLO)}
v_and_b32 {v(ones+1)}, {v(ones+1)}, {v(vMLO)}
v_accvgpr_write_b32 {ag(dst)}, {v(ones)}
v_accvgpr_write_b32 {ag(dst+1)}, {v(ones+1)}
v_accvgpr_write_b32 {ag(dst+2)}, 0
v_accvgpr_write_b32 {ag(dst+3)}, 0""")

PL = 144
AH = 208
SUM = 240
def p2():
    XR = AV
    chunk_addrs()
    a.wvm("xres", "O3")
    for k in range(8):
        a(f"v_lshlrev_b32 {v(AH+2*k)}, 16, {v(XR+k)}\nv_and_b32 {v(AH+2*k+1)}, 0xffff0000, {v(XR+k)}")
    a("s_barrier")
    for c, reg in ((0, 2), (1, 3), (2, 0), (3, 4)): a.add(chunk_read("O", c, reg))
    for k in range(8): a(f"v_mov_b32 {v(SUM+k)}, 0")
    a(f"""s_lshl_b32 {s(sO1)}, {s(sH)}, 16
s_add_u32 {s(sO1)}, {s(sO1)}, {s(sW1K)}
s_add_u32 {s(sO1)}, {s(sO1)}, {KVP}
s_lshl_b32 {s(t1)}, {s(sRB)}, 13
s_waitcnt lgkmcnt(0)""")
    stamp("wo_read")
    poll(C1, sH, 16)
    a("s_barrier")
    stamp("sync1")
    for p in range(16):
        a(f"s_and_b32 {s(t1)}, {s(t1)}, 0xffff\ns_add_u32 {s(t0)}, {s(sO1)}, {s(t1)}")
        a(f"buffer_load_dwordx4 {v(PL+4*p,4)}, {v(vL16)}, {s(RWS,4)}, {s(t0)} offen sc1", tag=f"P{p}")
        a(f"s_add_u32 {s(t1)}, {s(t1)}, 4096")
    gd = []
    for c in range(2): gd += chunk_dma("G", c, R[c])
    for p in range(16):
        a.wvm(f"P{p}")
        for k in range(4):
            a(f"v_dot2c_f32_bf16 {v(SUM+2*k)}, {s(sSELLO)}, {v(PL+4*p+k)}\nv_dot2c_f32_bf16 {v(SUM+2*k+1)}, {s(sSELHI)}, {v(PL+4*p+k)}")
        if p < len(gd): a.add(gd[p])
    a(f"v_add_u32 v2, {KVF}, {v(vL16)}\nv_add_u32 v3, {s(sW1K)}, v2")
    for k in range(4): a(f"v_cvt_pk_bf16_f32 {v(SUM+k)}, {v(SUM+2*k)}, {v(SUM+2*k+1)}")
    a(f"ds_write_b128 v3, {v(SUM,4)}\ns_waitcnt lgkmcnt(0)\ns_barrier")
    KF, NU = PL, PL + 16
    for f in range(4): a(f"ds_read_b128 {v(KF+4*f,4)}, v2 offset:{f*1024}", tag=f"kf{f}")
    a(f"""s_lshl_b32 {s(t0)}, {s(sRB)}, 2
s_add_u32 {s(t0)}, {s(t0)}, {s(sW)}
s_lshl_b32 {s(t0)}, {s(t0)}, 4
s_add_u32 {s(t0)}, {s(t0)}, {s(sH)}
s_lshl_b32 {s(t0)}, {s(t0)}, 11
s_add_u32 {s(sO1)}, {s(t0)}, {OB}""")
    for f in range(4):
        a.wlg(f"kf{f}"); a(f"{MF} {v(NU,16)}, {v(KF+4*f,4)}, {v(PH+4*f,4)}, {v(NU,16) if f else 0}")
    a(f"""v_add_f32 v2, {f2u(1e-6)}, {v(NU+12)}
v_rcp_f32 v2, v2
v_mov_b32 v3, v2
v_permlane32_swap_b32 v2, v3
v_mov_b32 v2, v3""")
    for k in range(8):
        a(f"v_pk_mul_f32 {v(NU+2*k,2)}, {v(NU+2*k,2)}, v[2:3]")
    for k in range(8): a(f"v_cvt_pk_bf16_f32 {v(KF+k)}, {v(NU+2*k)}, {v(NU+2*k+1)}")
    a(f"v_and_b32 {v(KF+6)}, {v(KF+6)}, {v(vMLO)}\nv_and_b32 {v(KF+7)}, {v(KF+7)}, {v(vMLO)}")
    for f in range(2):
        a(f"buffer_store_dwordx4 {v(KF+4*f,4)}, {v(vL16)}, {s(RWS,4)}, {s(sO1)} offen offset:{f*1024} sc1", tag="ost")
    stamp("o_stored")
    for c in range(2, 4):
        for g in chunk_dma("G", c, R[c]): a.add(g)
    a.wvm("ost"); a("s_barrier")
    signal(C2, sRB)
    stamp("sig2")
    for c in range(2): a.add(chunk_read("G", c, c))
    a.wvm("G3"); a("s_barrier")
    for c in range(2, 4): a.add(chunk_read("G", c, c))
    a("s_waitcnt lgkmcnt(0)")
    colsum("G", PL, PL + 16)
    stamp("g_read")

def p3():
    a(f"""s_lshr_b32 {s(t2)}, {s(sTT)}, 2
s_lshl_b32 {s(sO1)}, {s(sTT)}, 15
s_lshl_b32 {s(t3)}, {s(sW)}, 12
s_add_u32 {s(sO1)}, {s(sO1)}, {s(t3)}
s_add_u32 {s(sO1)}, {s(sO1)}, {OB}
v_add_u32 v2, {R[4]}, {v(vL16)}""")
    poll(C2, t2, 16)
    a("s_barrier")
    stamp("sync2")
    for g in range(2):
        a(f"s_add_u32 m0, {s(t3)}, {R[4] + g*16384}")
        if g: a(f"s_add_u32 {s(sO1)}, {s(sO1)}, 16384")
        for j in range(4):
            a(f"buffer_load_dwordx4 {v(vL16)}, {s(RWS,4)}, {s(sO1)} offen offset:{j*1024} sc1 lds", tag=f"ot{g}")
    ud = []
    for c in range(2): ud += chunk_dma("U", c, R[c])
    for g_ in ud[:4]: a.add(g_)
    a(f"""s_mul_i32 {s(t0)}, {s(sTT)}, {RS}
s_lshl_b32 {s(t1)}, {s(sNT)}, 11
s_add_u32 {s(t0)}, {s(t0)}, {s(t1)}
s_add_u32 {s(sO1)}, {s(t0)}, {HB}
s_mul_i32 {s(t0)}, {s(sTT)}, 14
s_add_u32 {s(t0)}, {s(t0)}, {s(sNT)}
s_lshl_b32 {s(t0)}, {s(t0)}, 8
s_add_u32 {s(t3)}, {s(t0)}, {ST}
v_mov_b32 {v(SUM)}, 0
v_mov_b32 {v(SUM+1)}, 0
v_lshlrev_b32 v3, 2, v0""")
    g = a.sub()
    for half in range(2):
        g.wvm(f"ot{half}"); g("s_barrier")
        def rd(ks): g(f"ds_read_b128 {v(PL+4*(ks%16),4)}, v2 offset:{ks*1024}", tag=f"of{ks}")
        PD = 6
        for ks in range(16*half, 16*half + PD): rd(ks)
        for ks in range(16*half, 16*half + 16):
            g.wlg(f"of{ks}")
            g(f"{MF} {v(AH,16)}, {v(WOF+4*ks,4)}, {v(PL+4*(ks%16),4)}, {v(AH,16)}")
            if ks + PD < 16*half + 16: rd(ks + PD)
    fl = a.sub()
    for g_ in ud[4:]: fl.add(g_)
    a.add(merge(g, fl, budget=28))
    for k in range(8): a(f"v_cvt_pk_bf16_f32 {v(PL+k)}, {v(AH+2*k)}, {v(AH+2*k+1)}")
    for f in range(2):
        a(f"buffer_store_dwordx4 {v(PL+4*f,4)}, {v(vL16)}, {s(RWS,4)}, {s(sO1)} offen offset:{f*1024} sc1", tag="hst")
    for k in range(8):
        a(f"v_dot2c_f32_bf16 {v(SUM)}, {s(sONES)}, {v(PL+k)}\nv_dot2c_f32_bf16 {v(SUM+1)}, {v(PL+k)}, {v(PL+k)}")
    a(f"v_permlane32_swap_b32 {v(SUM)}, {v(SUM+1)}\nv_add_f32 {v(SUM)}, {v(SUM)}, {v(SUM+1)}")
    a(f"buffer_store_dword {v(SUM)}, v3, {s(RWS,4)}, {s(t3)} offen sc1", tag="hst")
    stamp("h_stored")
    for c in range(2, 4):
        for g_ in chunk_dma("U", c, R[c]): a.add(g_)
    a.wvm("hst"); a("s_barrier")
    signal(C3, t2)
    a(f"s_cmp_ge_u32 {s(sI)}, 28\ns_cbranch_scc1 L_fin")
    stamp("sig3")
    for c in range(2): a.add(chunk_read("U", c, c))
    a.wvm("U3"); a("s_barrier")
    for c in range(2, 4): a.add(chunk_read("U", c, c))
    a("s_waitcnt lgkmcnt(0)")
    colsum("U", PL, PL + 16)
    stamp("u_read")

AC = 16
BR = 80
SR = 96
HR = 104
vH0, vH2, vSX = 2, 3, 4
vDO, vAD0, vAD1 = 5, 6, 7
def p4():
    a(f"""s_lshl_b32 {s(t2)}, {s(sRB4)}, 2
s_add_u32 {s(t0)}, {s(sW)}, {s(sROT4)}
s_and_b32 {s(t0)}, {s(t0)}, 3
s_mul_i32 {s(t0)}, {s(t0)}, 7168
s_mul_i32 {s(sO1)}, {s(t2)}, {RS}
s_add_u32 {s(sO1)}, {s(sO1)}, {s(t0)}
s_add_u32 {s(sO1)}, {s(sO1)}, {HB}
s_mul_i32 {s(t3)}, {s(sW)}, 7168
s_add_u32 {s(t1)}, {s(t2)}, {s(sW)}
s_mul_i32 {s(t1)}, {s(t1)}, {14*256}
s_add_u32 {s(sO2)}, {s(t1)}, {ST}
v_lshlrev_b32 v8, 2, v0
v_add_u32 {v(vH2)}, {R[2]}, {v(vL16)}
v_add_u32 {v(vSX)}, {STX}, {v(vL16)}""")
    poll(C3, sRB4, 16)
    a("s_barrier")
    stamp("sync3")
    def hdma(i):
        q = a.sub()
        for g in range(2):
            q(f"s_add_u32 m0, {s(t3)}, {R[i] + g*4096}")
            q(f"s_add_u32 {s(t0)}, {s(sO1)}, {i*RS + g*4096}")
            for j in range(4 - g):
                q(f"buffer_load_dwordx4 {v(vL16)}, {s(RWS,4)}, {s(t0)} offen offset:{j*1024} sc1 lds", tag=f"h{i}")
        return q
    a.add(hdma(0))
    SL = AC + 32
    for n in range(14):
        a(f"buffer_load_dword {v(SL+n)}, v8, {s(RWS,4)}, {s(sO2)} offen offset:{n*256} sc1", tag="stl")
    a.add(hdma(1))
    a(f"""s_mul_i32 {s(t0)}, {s(t2)}, {112*1024}
s_lshl_b32 {s(t1)}, {s(sFS)}, 13
s_add_u32 {s(t0)}, {s(t0)}, {s(t1)}
s_lshl_b32 {s(t1)}, {s(sW)}, 11
s_add_u32 {s(t0)}, {s(t0)}, {s(t1)}
s_add_u32 {s(sO2)}, {s(t0)}, {ACT}""")
    st = a.sub()
    st.wvm("stl")
    for n in range(1, 14): st(f"v_add_f32 {v(SL)}, {v(SL)}, {v(SL+n)}")
    st(f"""v_mul_f32 {v(SL)}, {f2u(1/448)}, {v(SL)}
v_mov_b32 {v(SL+1)}, {v(SL)}
v_permlane32_swap_b32 {v(SL)}, {v(SL+1)}
v_fma_f32 {v(SL+1)}, -{v(SL)}, {v(SL)}, {v(SL+1)}
v_max_f32 {v(SL+1)}, 0, {v(SL+1)}
v_add_f32 {v(SL+7)}, {f2u(1e-5)}, {v(SL+1)}
v_rsq_f32 {v(SL+6)}, {v(SL+7)}
v_sub_f32 {v(SL)}, 0, {v(SL)}
v_mul_f32 {v(SL+6)}, {f2u(-LOG2E)}, {v(SL+6)}
v_cvt_pk_bf16_f32 {v(SL+5)}, {v(SL)}, 0
v_lshlrev_b32 {v(SL+2)}, 16, {v(SL+5)}
v_sub_f32 {v(SL+2)}, {v(SL)}, {v(SL+2)}
v_cvt_pk_bf16_f32 {v(SL+4)}, {v(SL)}, {v(SL+2)}
v_and_b32 {v(SL+6)}, 0xffffff7f, {v(SL+6)}
v_and_b32 {v(SL+7)}, 0xffffff7f, {v(SL+7)}
v_add_u32 v8, {s(sW1K)}, {v(vSX)}""")
    st(f"ds_write_b128 v8, {v(SL+4,4)}", tag="stw")

    def epilogue(i):
        e = a.sub()
        G, U = AC + 32 * (i % 2), AC + 32 * (i % 2) + 16
        c1, s2 = SR + 4 * (i % 2) + 2, SR + 4 * (i % 2) + 3
        for k0 in range(0, 16, 4):
            ks = range(k0, k0 + 4)
            for k in ks: e(f"v_mul_f32 {v(U+k)}, {v(U+k)}, {v(G+k)}\nv_mul_f32 {v(G+k)}, {v(G+k)}, {v(c1)}")
            for k in ks: e(f"v_exp_f32 {v(G+k)}, {v(G+k)}")
            for k in ks: e(f"v_fma_f32 {v(G+k)}, {v(G+k)}, {v(s2)}, {v(s2)}")
            for k in ks: e(f"v_rcp_f32 {v(G+k)}, {v(G+k)}")
            for k in ks: e(f"v_mul_f32 {v(U+k)}, {v(U+k)}, {v(G+k)}")
            for k in (k0, k0 + 2): e(f"v_cvt_pk_bf16_f32 {v(G+k//2)}, {v(U+k)}, {v(U+k+1)}")
            if k0 % 8 == 4:
                f = k0 // 8
                if f == 0: e(f"s_add_u32 {s(t1)}, {s(sO2)}, {i*112*1024}")
                e(f"buffer_store_dwordx4 {v(G+4*f,4)}, {v(vL16)}, {s(RWS,4)}, {s(t1)} offen offset:{f*1024} sc1", tag=f"ast{i}")
        return e

    for i in range(4):
        g = a.sub()
        G, U = AC + 32 * (i % 2), AC + 32 * (i % 2) + 16
        ad, off = (vL16, R[i]) if i < 2 else (vH2, R[i] - R[2])
        g.wvm(f"h{i}"); g("s_barrier")
        def rd(sp): g(f"ds_read_b128 {v(BR+4*(sp%4),4)}, {v(ad)} offset:{off+sp*1024}", tag=f"hf{i}_{sp}")
        for sp in range(3): rd(sp)
        for sp in range(28):
            g.wlg(f"hf{i}_{sp}")
            g(f"{MF} {v(G,16)}, {ag(4*sp,4)}, {v(BR+4*(sp%4),4)}, {v(G,16) if sp else 0}")
            if sp + 3 < 28: rd(sp + 3)
            if i == 0 and sp == 20:
                g.wlg("stw"); g("s_barrier")
            if sp == 22:
                g(f"ds_read_b128 {v(SR+4*(i%2),4)}, {v(vSX)} offset:{i*1024}", tag=f"sr{i}")
            g(f"{MF} {v(U,16)}, {ag(112+4*sp,4)}, {v(BR+4*(sp%4),4)}, {v(U,16) if sp else 0}")
        g.wlg(f"sr{i}")
        g(f"{MF} {v(G,16)}, {ag(CSG,4)}, {v(SR+4*(i%2),4)}, {v(G,16)}")
        g(f"{MF} {v(U,16)}, {ag(CSU,4)}, {v(SR+4*(i%2),4)}, {v(U,16)}")
        fl = a.sub()
        if i == 0:
            fl.add(hdma(2)); fl.add(st); fl.add(hdma(3))
            a.add(merge(g, fl, budget=28))
        else:
            a.add(merge(g, epilogue(i - 1), start=2))
        stamp(f"t{i}")
    a.add(epilogue(3))
    stamp("act_stored")

def p5():
    srd(RW, pWD, 1792 * 896); srd(RX, pOUT, 2048 * 896)
    a(f"""v_lshrrev_b32 v8, 3, v0
v_bfe_u32 v9, v0, 4, 1
v_lshlrev_b32 v9, 2, v9
v_xor_b32 v9, v9, v0
v_and_b32 v9, 7, v9
v_lshlrev_b32 v9, 4, v9
v_mul_u32_u24 v8, 896, v8
v_add_u32 {v(vDO)}, v8, v9
s_mul_i32 {s(t3)}, {s(sW)}, 40960
v_bfe_u32 v8, v0, 2, 2
v_lshrrev_b32 v9, 5, v0
v_lshl_add_u32 v9, v9, 2, v8
v_lshlrev_b32 v9, 7, v9
v_lshrrev_b32 v8, 1, v8
v_lshl_add_u32 v9, v8, 6, v9
v_bfe_u32 v8, v0, 4, 1
v_lshl_add_u32 v9, v8, 5, v9
v_and_b32 v8, 3, v0
v_lshl_add_u32 v9, v8, 3, v9
v_add_u32 {v(vAD0)}, {s(t3)}, v9
v_xor_b32 {v(vAD1)}, 64, {v(vAD0)}
s_mul_i32 {s(sO1)}, {s(sW)}, {448*896}
s_lshl_b32 {s(t0)}, {s(sCT)}, 7
s_add_u32 {s(sO1)}, {s(sO1)}, {s(t0)}""")
    a.wvm("ast3"); a("s_barrier")
    signal(C4, sRB4)
    stamp("sig4")
    def ddma(b):
        for j in range(2):
            a(f"s_add_u32 m0, {s(t3)}, {(b%20)*2048 + j*1024}\ns_add_u32 {s(t0)}, {s(sO1)}, {(16*b+8*j)*896}")
            a(f"buffer_load_dwordx4 {v(vDO)}, {s(RW,4)}, {s(t0)} offen lds", tag=f"D{b}")
    def dread(b):
        a.wvm(f"D{b}")
        for nt in range(2):
            for u in range(2):
                a(f"ds_read_b64_tr_b16 {ag(8*b+4*nt+2*u,2)}, {v(vAD0+nt)} offset:{(b%20)*2048+u*1024}", tag=f"dr{b}")
    a(f"""v_lshrrev_b32 v8, 3, v0
s_lshl_b32 {s(t0)}, {s(sW)}, 3
v_add_u32 v8, {s(t0)}, v8
v_bfe_u32 v9, v0, 1, 2
v_lshlrev_b32 v9, 10, v9
v_lshl_add_u32 v9, v8, 4, v9
v_and_b32 v10, 1, v0
v_lshl_add_u32 v9, v10, 3, v9
s_lshl_b32 {s(t2)}, {s(sRB4)}, 2
s_add_u32 {s(t2)}, {s(t2)}, {s(sHALF)}
s_mul_i32 {s(t0)}, {s(t2)}, {RS}
s_lshl_b32 {s(t1)}, {s(sCT)}, 12
s_add_u32 {s(t0)}, {s(t0)}, {s(t1)}
s_add_u32 {s(t0)}, {s(t0)}, {HB}
s_add_u32 {s(t1)}, {s(t0)}, {2*RS}""")
    for tb in range(2):
        for hh in range(2):
            a(f"buffer_load_dwordx2 {v(HR+4*tb+2*hh,2)}, v9, {s(RWS,4)}, {s(t0+tb)} offen offset:{hh*512} sc1", tag="hres")
    for b in range(6): ddma(b)
    for b in range(28):
        if b + 6 < 28:
            if b + 6 >= 20: a.wlg(f"dr{b+6-20}")
            ddma(b + 6)
        dread(b)
    vOUT, vRW, vRR = 10, 11, 12
    QS = 1088
    a(f"""v_mul_u32_u24 {v(vOUT)}, 896, v8
v_and_b32 v9, 7, v0
v_lshl_add_u32 {v(vOUT)}, v9, 4, {v(vOUT)}
v_mul_u32_u24 {v(vRR)}, {QS}, v9
v_lshl_add_u32 {v(vRR)}, v8, 4, {v(vRR)}
s_mul_i32 {s(t0)}, {s(sW)}, {8*QS}
v_add_u32 {v(vRW)}, {s(t0)}, {v(vL16)}
s_mul_i32 {s(sO1)}, {s(t2)}, {112*1024}
s_add_u32 {s(sO1)}, {s(sO1)}, {s(sWB)}
s_add_u32 {s(sO1)}, {s(sO1)}, {ACT}
s_mul_i32 {s(sO2)}, {s(t2)}, {RS}
s_lshl_b32 {s(t0)}, {s(sCT)}, 7
s_add_u32 {s(sO2)}, {s(sO2)}, {s(t0)}
s_waitcnt lgkmcnt(0)""")
    stamp("wd_read")
    poll(C4, sRB4, 14)
    a("s_barrier")
    stamp("sync4")
    AF = 112
    NS = 32
    def ald(n):
        tb, sp = n // 28, n % 28
        if sp % 4 == 0: a(f"s_add_u32 {s(t0)}, {s(sO1)}, {tb*2*112*1024 + sp*1024}")
        a(f"buffer_load_dwordx4 {v(AF+4*(n%NS),4)}, {v(vL16)}, {s(RWS,4)}, {s(t0)} offen offset:{(sp%4)*1024} sc1", tag=f"A{n}")
    PD = 12
    for n in range(PD): ald(n)
    def reduce_write(tb):
        for q in range(8):
            a(f"ds_write_b128 {v(vRW)}, {v(AC+32*tb+4*q,4)} offset:{tb*4*8*QS + q*QS}", tag=f"rw{tb}")
    def reduce_finish(tb):
        T = AC + 32 * tb
        a.wlg(f"rw{tb}"); a("s_barrier")
        for w in range(4):
            for hh in range(2):
                a(f"ds_read_b128 {v(T+8*w+4*hh,4)}, {v(vRR)} offset:{tb*4*8*QS + w*8*QS + hh*512}", tag=f"rr{tb}_{w}")
        a.wvm("hres")
        for k in range(4):
            a(f"v_lshlrev_b32 {v(BR+2*k)}, 16, {v(HR+4*tb+k)}\nv_and_b32 {v(BR+2*k+1)}, 0xffff0000, {v(HR+4*tb+k)}")
        for w in range(4):
            a.wlg(f"rr{tb}_{w}")
            for k in range(4): a(f"v_pk_add_f32 {v(BR+2*k,2)}, {v(BR+2*k,2)}, {v(T+8*w+2*k,2)}")
        for k in range(4): a(f"v_cvt_pk_bf16_f32 {v(BR+8+k)}, {v(BR+2*k)}, {v(BR+2*k+1)}")
        if tb: a(f"s_add_u32 {s(sO2)}, {s(sO2)}, {2*RS}")
        a(f"buffer_store_dwordx4 {v(BR+8,4)}, {v(vOUT)}, {s(RX,4)}, {s(sO2)} offen")
    for n in range(56):
        tb, sp = n // 28, n % 28
        if n + PD < 56: ald(n + PD)
        a.wvm(f"A{n}")
        for nt in range(2):
            acc = AC + 32 * tb + 16 * nt
            a(f"{MF} {v(acc,16)}, {ag(8*sp+4*nt,4)}, {v(AF+4*(n%NS),4)}, {v(acc,16) if sp else 0}")
        if n == 30: reduce_write(0)
        if n == 40: reduce_finish(0)
    reduce_write(1)
    reduce_finish(1)
    stamp("end")

phases = [p1, p2, p3, p4, p5]
for k, p in enumerate(phases):
    p()
    if STOP == k + 1: break
a("L_fin:")
if STAMPS:
    a(f"""s_lshl_b32 {s(t0)}, s2, 2
s_add_u32 {s(t0)}, {s(t0)}, {s(sW)}
s_lshl_b32 {s(t0)}, {s(t0)}, 8
s_add_u32 {s(t0)}, {s(t0)}, {STAMP_OFF}
s_waitcnt vmcnt(0)
s_memrealtime s[92:93]
s_waitcnt lgkmcnt(0)
v_writelane_b32 v255, s92, 62
v_lshlrev_b32 v2, 2, v0
buffer_store_dword v255, v2, {s(RWS,4)}, {s(t0)} offen""")
a("L_end:\ns_endpgm")

hdr = open(f"cdna_kernels/{NAME}.s.ref").read().split("; Override launch")[0]
txt = hdr + f"""; @launch grid=(256,1,1) block=(256,1,1) lds={LDS_BYTES}
.amdgcn_target "amdgcn-amd-amdhsa--gfx950"
.text
.globl {NAME}_kernel
.p2align 8
.type {NAME}_kernel,@function
{NAME}_kernel:
""" + finalize(a, verbose=True) + f""".section .rodata,"a"
.p2align 6
.amdhsa_kernel {NAME}_kernel
  .amdhsa_next_free_vgpr 512
  .amdhsa_next_free_sgpr 102
  .amdhsa_accum_offset 256
  .amdhsa_group_segment_fixed_size 0
  .amdhsa_kernarg_size 88
  .amdhsa_user_sgpr_count 2
  .amdhsa_user_sgpr_kernarg_segment_ptr 1
  .amdhsa_system_sgpr_workgroup_id_x 1
.end_amdhsa_kernel
"""
open(OUT, "w").write(txt)
if STAMPS: open(OUT + ".names", "w").write("\n".join(STAMP_NAMES))
```

```python
import sys
from asmlib import *

NAME = "sequential_preLN__linear_kernel_hedgehog__swiglu_ffn__prompt"
STAMPS = "--stamps" in sys.argv
STOP = None
for a_ in sys.argv:
    if a_.startswith("--stop="): STOP = int(a_.split("=")[1])
OUT = [a_ for a_ in sys.argv[1:] if not a_.startswith("--")]
OUT = OUT[0] if OUT else f"cdna_kernels/{NAME}.s"

CNT = 0
KVP = 0x10000
OB = KVP + (1 << 20)
HB = OB + (2 << 20)
ST = HB + (2 << 20)
ACT = ST + (1 << 18)
WS_USED = ACT + (7 << 20)
STAMP_OFF = 16 << 20
WS_SIZE = 32 << 20
C1, C2, C3, C4 = 0, 16, 32, 48
NINIT = 14
RS = 28672
R = [RS * i for i in range(5)]
SP = RS * 5
WPHI = SP + 4096
KVF = WPHI + 2048
STX = 163840 - 4096
LDS_BYTES = 163840
EXW = 6656
SPIN_MAX = 1 << 17
LOG2E = 1.4426950408889634

import struct
def f2u(x): return "0x%08x" % struct.unpack("<I", struct.pack("<f", x))[0]
def v(a, n=1): return f"v{a}" if n == 1 else f"v[{a}:{a+n-1}]"
def ag(a, n=1): return f"a{a}" if n == 1 else f"a[{a}:{a+n-1}]"
def s(a, n=1): return f"s{a}" if n == 1 else f"s[{a}:{a+n-1}]"
MF = "v_mfma_f32_32x32x16_bf16"

sW = 3
pX, pQKV, pPHI, pWO, pWG, pWU, pWD, pOUT, pDBG, pWS = 4, 6, 8, 10, 14, 16, 18, 20, 22, 24
t0, t1 = 26, 27
RX, RW, RP, RWS, RO, RG, RU = 28, 32, 36, 40, 44, 48, 52
sH, sRB, sROT, sI, sXCD = 56, 57, 58, 59, 60
sXB, sXO, sXE = 61, 62, 63
sWO = 64
sW1K = 71
sWB = 72
sTT, sCG, sNT = 73, 74, 75
sRB4, sFS, sROT4, sCT, sHALF = 76, 77, 78, 79, 80
sSELLO, sSELHI, sONES, sL2E = 81, 82, 83, 84
sCA = 86
sCV, sSPIN = 88, 89
t2, t3 = 12, 13
sO1, sO2 = 90, 91
sSTAMP = 92

a = Asm()
nstamp = [0]
def stamp(name):
    if not STAMPS: return
    k = nstamp[0]; nstamp[0] += 1
    a(f"s_memtime s[92:93]\ns_waitcnt lgkmcnt(0)\nv_writelane_b32 v255, s92, {k}")
    STAMP_NAMES.append(name)
STAMP_NAMES = []

def srd(r, p, size):
    a(f"s_mov_b32 {s(r)}, {s(p)}\ns_mov_b32 {s(r+1)}, {s(p+1)}\ns_mov_b32 {s(r+2)}, {size}\ns_mov_b32 {s(r+3)}, 0x20000")

lab = [0]
def newlab(p):
    lab[0] += 1
    return f"L_{p}_{lab[0]}"

def wave0(body):
    l = newlab("w0")
    a(f"s_cmp_lg_u32 {s(sW)}, 0\ns_cbranch_scc1 {l}")
    a.cond = True
    body()
    a.cond = False
    a(f"{l}:")

def cnt_addr(base, idx_sgpr, extra=0):
    a(f"s_lshl_b32 {s(t0)}, {s(idx_sgpr)}, 7\ns_add_u32 {s(t0)}, {s(t0)}, {CNT + (base + extra) * 128}")
    a(f"s_add_u32 {s(sCA)}, {s(pWS)}, {s(t0)}\ns_addc_u32 {s(sCA+1)}, {s(pWS+1)}, 0")

def signal(base, idx_sgpr):
    def body():
        cnt_addr(base, idx_sgpr)
        a(f"s_mov_b32 {s(sCV)}, 1\ns_atomic_add {s(sCV)}, {s(sCA,2)}, 0")
    wave0(body)

def spin(addr, n, load=False):
    lp, dn = newlab("poll"), newlab("done")
    rd = f"s_load_dword {s(sCV)}, {s(addr,2)}, 0 glc" if load else f"s_mov_b32 {s(sCV)}, 0\ns_atomic_add {s(sCV)}, {s(addr,2)}, 0 glc"
    a(f"""s_mov_b32 {s(sSPIN)}, 0
s_waitcnt lgkmcnt(0)
{lp}:
{rd}
s_add_u32 {s(sSPIN)}, {s(sSPIN)}, 1
s_waitcnt lgkmcnt(0)
s_cmp_ge_u32 {s(sCV)}, {n}
s_cbranch_scc1 {dn}
s_cmp_lt_u32 {s(sSPIN)}, {SPIN_MAX}
s_cbranch_scc1 {lp}
{dn}:""")

def poll(base, idx_sgpr, n):
    def body():
        cnt_addr(base, idx_sgpr)
        spin(sCA, n)
    wave0(body)

vL = 0
vL16 = 1
vXO = 2
vAX = 6
vWOF = 10
vAW = 11
vAWK = 12
vMLO = 13
vMF = 14
vT = 15
XF = 16
WR = 128
AK = 160
AV = 176
PK = 192
EM = 208
PH = 224
M = 240
WP = ag(232)

def p1():
    a(f"""s_cmp_ge_u32 s2, 256
s_cbranch_scc1 L_end
s_load_dwordx16 s[4:19], s[0:1], 0
s_load_dwordx4 s[20:23], s[0:1], 64
s_load_dwordx2 s[24:25], s[0:1], 80
v_lshrrev_b32 v1, 6, v0
v_and_b32 v0, 63, v0
v_readfirstlane_b32 {s(sW)}, v1
s_and_b32 {s(sXCD)}, s2, 7
s_lshr_b32 {s(sI)}, s2, 3
s_and_b32 {s(t0)}, {s(sI)}, 3
s_lshr_b32 {s(t1)}, {s(sI)}, 2
s_lshr_b32 {s(sRB)}, {s(sXCD)}, 2
s_lshl_b32 {s(sRB)}, {s(sRB)}, 3
s_add_u32 {s(sRB)}, {s(sRB)}, {s(t1)}
s_lshl_b32 {s(sROT)}, {s(t0)}, 1
s_add_u32 {s(sROT)}, {s(sROT)}, {s(t1)}
s_sub_u32 {s(sH)}, {s(sROT)}, 7
s_cmp_ge_u32 {s(sROT)}, 7
s_cselect_b32 {s(sROT)}, {s(sH)}, {s(sROT)}
s_and_b32 {s(sH)}, {s(sXCD)}, 3
s_lshl_b32 {s(sH)}, {s(sH)}, 2
s_add_u32 {s(sH)}, {s(sH)}, {s(t0)}
s_lshl_b32 {s(sXB)}, {s(sRB)}, 2
s_add_u32 {s(sXB)}, {s(sXB)}, {s(sW)}
s_mul_i32 {s(sXB)}, {s(sXB)}, {RS}
s_mul_i32 {s(sWB)}, {s(sW)}, {RS}
s_lshl_b32 {s(sXO)}, {s(sROT)}, 7
s_add_u32 {s(sXO)}, {s(sXO)}, {s(sXB)}
s_add_u32 {s(sXE)}, {s(sXB)}, 896
v_lshrrev_b32 v6, 3, v0
v_and_b32 v7, 7, v0
v_lshrrev_b32 v8, 4, v0
v_xor_b32 v7, v7, v8
v_lshlrev_b32 v7, 4, v7
v_mul_u32_u24 v6, 896, v6
v_add_u32 v2, v6, v7
v_xor_b32 v3, 64, v2
v_add_u32 v3, 6144, v3
v_add_u32 v4, 12288, v2
v_add_u32 v5, 12288, v3
v_lshlrev_b32 {v(vL16)}, 4, v0
s_waitcnt lgkmcnt(0)""")
    if STAMPS:
        a("v_mov_b32 v255, 0\ns_memrealtime s[92:93]\ns_waitcnt lgkmcnt(0)\nv_writelane_b32 v255, s92, 63")
    stamp("start")
    srd(RX, pX, 2048 * 896)

    def xdma(c):
        q = a.sub()
        q(f"s_add_u32 m0, {s(sWB)}, {c*4096}")
        if c > 0:
            q(f"s_add_u32 {s(sXO)}, {s(sXO)}, 128\ns_cmp_eq_u32 {s(sXO)}, {s(sXE)}\ns_cselect_b32 {s(sXO)}, {s(sXB)}, {s(sXO)}")
        for j in range(4):
            q(f"buffer_load_dwordx4 {v(vXO+j)}, {s(RX,4)}, {s(sXO)} offen offset:{1024*j} lds", tag=f"X{c}")
        return q
    for c in range(3): a.add(xdma(c))

    srd(RW, pQKV, 448 * 2688); srd(RP, pPHI, 16 * 1568); srd(RWS, pWS, WS_SIZE)
    l = newlab("init")
    a(f"""v_mov_b32 {v(M)}, 0
v_mov_b32 {v(M+1)}, 0
v_mov_b32 {v(M+2)}, 0
v_mov_b32 {v(M+3)}, 0
s_lshl_b32 {s(t0)}, s2, 10
s_cmp_lt_u32 s2, {NINIT}
s_cselect_b32 {s(sO1)}, {s(sW)}, 0
s_cmp_eq_u32 {s(sO1)}, 3
s_cbranch_scc0 {l}""")
    a.cond = True
    a(f"buffer_store_dwordx4 {v(M,4)}, {v(vL16)}, {s(RWS,4)}, {s(t0)} offen sc1", tag="INIT")
    a.cond = False
    a(f"{l}:")
    a(f"""s_lshl_b32 {s(sW1K)}, {s(sW)}, 10
s_mul_i32 {s(t0)}, {s(sW)}, {16*2688}
s_mul_i32 {s(t1)}, {s(sH)}, 56
s_add_u32 {s(t0)}, {s(t0)}, {s(t1)}
s_add_u32 {s(t1)}, {s(t0)}, {7*64*2688}
s_mul_i32 {s(sWO)}, {s(sROT)}, {64*2688}
s_add_u32 {s(sWO)}, {s(sWO)}, {s(t0)}""")
    for c in range(1, 7):
        a(f"s_add_u32 {s(sWO+c)}, {s(sWO+c-1)}, {64*2688}\ns_cmp_eq_u32 {s(sWO+c)}, {s(t1)}\ns_cselect_b32 {s(sWO+c)}, {s(t0)}, {s(sWO+c)}")
    a(f"""s_mov_b32 {s(sONES)}, 0x3f803f80
s_mov_b32 {s(sSELLO)}, 0x00003f80
s_mov_b32 {s(sSELHI)}, 0x3f800000
s_mov_b32 {s(sL2E)}, {f2u(LOG2E)}
v_and_b32 v6, 31, v0
v_lshrrev_b32 v7, 5, v0
v_bfe_u32 v8, v0, 1, 3
v_xor_b32 v8, v8, v7
v_lshlrev_b32 v8, 4, v8
v_lshl_add_u32 v6, v6, 7, v8
v_add_u32 {v(vAX)}, {s(sWB)}, v6
v_add_u32 {v(vMLO)}, -1, v7
v_and_b32 {v(vMF)}, 1.0, {v(vMLO)}
v_lshrrev_b32 {v(vWOF)}, 2, v0
v_mul_u32_u24 {v(vWOF)}, 2688, {v(vWOF)}
v_and_b32 v8, 3, v0
v_lshlrev_b32 v9, 4, v8
v_min_u32 v9, 40, v9
v_add_u32 {v(vWOF)}, {v(vWOF)}, v9
v_bfe_u32 v9, v0, 4, 1
v_lshl_add_u32 v8, v9, 2, v8
v_bfe_u32 v9, v0, 2, 2
v_lshl_add_u32 {v(M+4)}, v7, 2, v9
v_mul_u32_u24 {v(M+4)}, 56, {v(M+4)}
v_min_u32 {v(M+5)}, 6, v8
v_lshl_add_u32 {v(M+4)}, {v(M+5)}, 3, {v(M+4)}
v_add_u32 {v(M+4)}, {WPHI}, {v(M+4)}
v_lshl_add_u32 v9, v7, 3, v9
v_xor_b32 {v(M+5)}, 1, v8
v_cmp_le_u32 vcc, 6, v8
v_cndmask_b32 v8, v8, {v(M+5)}, vcc
v_lshlrev_b32 v8, 3, v8
v_lshl_add_u32 {v(vAW)}, v9, 6, v8
v_add_u32 {v(vAWK)}, {R[4]}, {v(vAW)}
v_xor_b32 {v(vAX+1)}, 32, {v(vAX)}
v_xor_b32 {v(vAX+2)}, 64, {v(vAX)}
v_xor_b32 {v(vAX+3)}, 96, {v(vAX)}""")
    def wdma(m, c, region):
        mcol = {"q": 0, "k": 896, "v": 1792}[m]
        q = a.sub()
        q(f"s_add_u32 m0, {s(sW1K)}, {region + c*4096 - mcol}" if region + c*4096 - mcol >= 0 else
          f"s_add_u32 m0, {s(sW1K)}, {region + c*4096}\ns_add_u32 {s(t0)}, {s(sWO+c)}, {mcol}")
        if region + c*4096 - mcol >= 0:
            q(f"buffer_load_dwordx4 {v(vWOF)}, {s(RW,4)}, {s(sWO+c)} offen offset:{mcol} lds", tag=f"{m}{c}")
        else:
            q(f"buffer_load_dwordx4 {v(vWOF)}, {s(RW,4)}, {s(t0)} offen lds", tag=f"{m}{c}")
        return q
    def pdma():
        q = a.sub()
        q(f"""s_and_b32 {s(t0)}, {s(sW1K)}, 1024
s_add_u32 m0, {s(t0)}, {WPHI}
s_mul_i32 {s(t1)}, {s(sH)}, 1568
s_add_u32 {s(t0)}, {s(t0)}, {s(t1)}""")
        q(f"buffer_load_dwordx4 {v(vL16)}, {s(RP,4)}, {s(t0)} offen lds", tag="phi")
        return q
    for c in range(7):
        a.wvm(f"X{c}")
        for q in range(4):
            a(f"ds_read_b128 {v(XF+16*c+4*q,4)}, {v(vAX+q)} offset:{c*4096}", tag=f"xr{c}")
        if c < 4: a.add(xdma(c + 3))
        elif c == 4:
            a.add(pdma())
            for k in range(3): a.add(wdma("k", k, R[4]))
        elif c == 5:
            for k in range(3, 7): a.add(wdma("k", k, R[4]))
        if c == 3:
            l = newlab("init2")
            a(f"s_cmp_eq_u32 {s(sO1)}, 3\ns_cbranch_scc0 {l}")
            a.cond = True
            a(f"s_mov_b32 {s(sCV)}, 1\ns_atomic_add {s(sCV)}, {s(pDBG,2)}, 0")
            a.cond = False
            a(f"{l}:")
        a.wlg(f"xr{c}")
        if c == 6:
            a("s_barrier")
            for k in range(4): a.add(wdma("v", k, R[0]))
        for r in range(16):
            a(f"v_dot2c_f32_bf16 {v(M)}, {s(sONES)}, {v(XF+16*c+r)}\nv_dot2c_f32_bf16 {v(M+1)}, {v(XF+16*c+r)}, {v(XF+16*c+r)}")
    stamp("x_done")
    a(f"""v_permlane32_swap_b32 {v(M)}, {v(M+1)}
v_add_f32 {v(M)}, {v(M)}, {v(M+1)}
v_mul_f32 {v(M)}, {f2u(1/448)}, {v(M)}
v_mov_b32 {v(M+1)}, {v(M)}
v_permlane32_swap_b32 {v(M)}, {v(M+1)}
v_fma_f32 {v(M+1)}, -{v(M)}, {v(M)}, {v(M+1)}
v_max_f32 {v(M+1)}, 0, {v(M+1)}
v_add_f32 {v(M+1)}, {f2u(1e-5)}, {v(M+1)}
v_rsq_f32 {v(M+1)}, {v(M+1)}
v_cvt_pk_bf16_f32 {v(M+1)}, {v(M+1)}, {v(M+1)}
v_and_b32 {v(M+2)}, 0xffff0000, {v(M+1)}
v_and_b32 {v(M+1)}, 0xffff, {v(M+1)}
v_mul_f32 {v(M)}, {v(M)}, {v(M+2)}
v_sub_f32 {v(M)}, 0, {v(M)}""")
    nrm = a.sub()
    TP = PK
    for r in range(112 + 2):
        if r < 112:
            k = TP + 2 * (r % 4)
            nrm(f"v_dot2_f32_bf16 {v(k)}, {v(XF+r)}, {v(M+1)}, {v(M)}\nv_dot2_f32_bf16 {v(k+1)}, {v(XF+r)}, {v(M+2)}, {v(M)}")
        if r >= 2:
            k = TP + 2 * ((r - 2) % 4)
            nrm(f"v_cvt_pk_bf16_f32 {v(XF+r-2)}, {v(k)}, {v(k+1)}")
    fill = [wdma("v", k, R[0]) for k in range(4, 7)] + [wdma("q", k, R[1]) for k in range(7)]
    a.add(spread(nrm, fill, 30))
    stamp("norm_done")

    def gemm(m, addr, base, acc, x_is_b=True):
        g = a.sub()
        def rd(sp):
            for u in range(2):
                g(f"ds_read_b64_tr_b16 {v(WR+4*(sp%8)+2*u,2)}, {v(addr)} offset:{base+sp*1024+u*256}", tag=f"{m}f{sp}")
        PD = 5
        for sp in range(PD): rd(sp)
        for sp in range(28):
            g.wlg(f"{m}f{sp}")
            wf, xf = v(WR+4*(sp%8),4), v(XF+4*sp,4)
            A, B = (wf, xf) if x_is_b else (xf, wf)
            g(f"{MF} {v(acc,16)}, {A}, {B}, {v(acc,16) if sp else 0}")
            if sp + PD < 28: rd(sp + PD)
        return g

    WPF = M + 6
    def softmax(acc, plain):
        hd = a.sub(); b = a.sub()
        for k in range(8): hd(f"v_cvt_pk_bf16_f32 {v(EM+k)}, {v(acc+2*k)}, {v(acc+2*k+1)}")
        hd(f"{MF} {v(PK,16)}, {v(WPF,4)}, {v(EM,4)}, 0")
        hd(f"{MF} {v(PK,16)}, {v(WPF+4,4)}, {v(EM+4,4)}, {v(PK,16)}")
        mx, mn, u0, u1 = acc, acc + 1, acc + 2, acc + 3
        b(f"v_max3_f32 {v(mx)}, {v(PK)}, {v(PK+1)}, {v(PK+2)}\nv_min3_f32 {v(mn)}, {v(PK)}, {v(PK+1)}, {v(PK+2)}")
        for k in range(3, 15, 2):
            b(f"v_max3_f32 {v(mx)}, {v(mx)}, {v(PK+k)}, {v(PK+k+1)}\nv_min3_f32 {v(mn)}, {v(mn)}, {v(PK+k)}, {v(PK+k+1)}")
        b(f"""v_max_f32 {v(mx)}, {v(mx)}, {v(PK+15)}
v_min_f32 {v(mn)}, {v(mn)}, {v(PK+15)}
v_sub_f32 {v(mn)}, 0, {v(mn)}
v_permlane32_swap_b32 {v(mx)}, {v(mn)}
v_max_f32 {v(mx)}, {v(mx)}, {v(mn)}
v_mul_f32 {v(mx)}, {f2u(-LOG2E)}, {v(mx)}
v_mov_b32 {v(mn)}, {v(mx)}
v_permlane32_swap_b32 {v(mx)}, {v(mn)}""")
        for k in range(16):
            b(f"v_fma_f32 {v(EM+k)}, -{v(PK+k)}, {s(sL2E)}, {v(mn)}\nv_fma_f32 {v(PK+k)}, {v(PK+k)}, {s(sL2E)}, {v(mx)}")
        for k in range(16):
            b(f"v_exp_f32 {v(PK+k)}, {v(PK+k)}\nv_exp_f32 {v(EM+k)}, {v(EM+k)}")
        for (E, d0, d1) in ((PK, mx, u0), (EM, mn, u1)):
            b(f"v_add_f32 {v(d0)}, {v(E)}, {v(E+1)}\nv_add_f32 {v(d1)}, {v(E+12)}, {v(E+13)}")
        for k in range(2, 12):
            b(f"v_add_f32 {v(mx)}, {v(mx)}, {v(PK+k)}\nv_add_f32 {v(mn)}, {v(mn)}, {v(EM+k)}")
        for k in (14, 15):
            b(f"v_add_f32 {v(u0)}, {v(u0)}, {v(PK+k)}\nv_add_f32 {v(u1)}, {v(u1)}, {v(EM+k)}")
        b(f"""v_fmac_f32 {v(mx)}, {v(u0)}, {v(vMF)}
v_fmac_f32 {v(mn)}, {v(u1)}, {v(vMF)}
v_permlane32_swap_b32 {v(mx)}, {v(mn)}
v_add_f32 {v(mx)}, {v(mx)}, {v(mn)}
v_rcp_f32 {v(mx)}, {v(mx)}
v_mov_b32 {v(mn)}, {v(mx)}
v_permlane32_swap_b32 {v(mx)}, {v(mn)}""")
        for (E, rr, o) in ((PK, mx, PH), (EM, mn, PH + 8)):
            for k in range(8):
                b(f"v_mul_f32 {v(E+2*k)}, {v(E+2*k)}, {v(rr)}\nv_mul_f32 {v(E+2*k+1)}, {v(E+2*k+1)}, {v(rr)}")
                b(f"v_cvt_pk_bf16_f32 {v(o+k)}, {v(E+2*k)}, {v(E+2*k+1)}")
        return hd, b

    a.wvm("k6", "phi"); a("s_barrier")
    for sf in range(2):
        for u in range(2):
            a(f"ds_read_b64_tr_b16 {v(WPF+4*sf+2*u,2)}, {v(M+4)} offset:{(16*sf+8*u)*56}", tag="wp")
    aE, aEV, aT, aVR = vAX, vAX + 1, vAX + 2, vAX + 3
    pre = a.sub()
    pre(f"""s_mul_i32 {s(t0)}, {s(sW)}, {EXW}
s_add_u32 {s(t0)}, {s(t0)}, {R[4]}
v_lshrrev_b32 v2, 5, v0
v_lshl_add_u32 v3, v2, 6, {v(vL16)}
v_add_u32 {v(aE)}, {s(t0)}, v3
v_add_u32 {v(aEV)}, {s(t0)}, {v(vL16)}
v_add_u32 {v(aVR)}, {R[4]}, {v(vL16)}
s_lshr_b32 {s(t0)}, {s(sW)}, 1
s_mul_i32 {s(t0)}, {s(t0)}, 2304
s_add_u32 {s(t0)}, {s(t0)}, {R[4]}
v_bfe_u32 v3, v0, 2, 2
v_lshl_add_u32 v2, v2, 2, v3
v_lshlrev_b32 v2, 4, v2
v_bfe_u32 v3, v0, 4, 1
v_mul_u32_u24 v3, 1152, v3
v_add_u32 v2, v2, v3
v_and_b32 v3, 1, v0
v_mul_u32_u24 v3, 576, v3
v_add_u32 v2, v2, v3
v_bfe_u32 v3, v0, 1, 1
v_lshl_add_u32 v2, v3, 3, v2
v_add_u32 {v(aT)}, {s(t0)}, v2
v_and_b32 {v(WPF+6)}, {v(WPF+6)}, {v(vMLO)}
v_and_b32 {v(WPF+7)}, {v(WPF+7)}, {v(vMLO)}""")
    a.add(merge(gemm("k", vAWK, 0, AK), pre, start=2))
    stamp("k_done")
    hd, body = softmax(AK, True)
    a.add(hd)
    a.wvm("v6"); a("s_barrier")
    a.add(merge(gemm("v", vAW, R[0], AV, x_is_b=False), body, start=1))
    for k in (6, 7, 14, 15): a(f"v_and_b32 {v(PH+k)}, {v(PH+k)}, {v(vMLO)}")
    for f in range(4): a(f"ds_write_b128 {v(aE)}, {v(PH+4*f,4)} offset:{f*1152}")
    a(f"v_and_b32 v2, 31, v0\nv_cmp_eq_u32 vcc, 28, v2\nv_mov_b32 v3, {s(sONES)}")
    for k in range(8): a(f"v_cvt_pk_bf16_f32 {v(AV+k)}, {v(AV+2*k)}, {v(AV+2*k+1)}")
    for k in range(8): a(f"v_cndmask_b32 {v(AV+k)}, {v(AV+k)}, v3, vcc")
    for f in range(2): a(f"ds_write_b128 {v(aEV)}, {v(AV+4*f,4)} offset:{4608+f*1024}")
    a(f"global_load_dword {v(vT)}, {v(M+3)}, {s(pDBG,2)} sc1", tag="dbg")
    stamp("phik_done")
    a("s_waitcnt lgkmcnt(0)\ns_barrier")
    for ks in range(8):
        wq, sq = ks // 2, ks % 2
        for u in range(2):
            a(f"ds_read_b64_tr_b16 {v(WR+4*ks+2*u,2)}, {v(aT)} offset:{wq*EXW+(16*sq+8*u)*16}", tag=f"e{ks}")
        a(f"ds_read_b128 {v(PK+4*ks,4)}, {v(aVR)} offset:{wq*EXW+4608+sq*1024}", tag=f"e{ks}")
        if ks >= 3:
            a.wlg(f"e{ks-3}"); a(f"{MF} {v(AV,16)}, {v(WR+4*(ks-3),4)}, {v(PK+4*(ks-3),4)}, {v(AV,16) if ks>3 else 0}")
    a(f"""s_lshl_b32 {s(t0)}, {s(sH)}, 4
s_add_u32 {s(t0)}, {s(t0)}, {s(sRB)}
s_lshl_b32 {s(t0)}, {s(t0)}, 12
s_add_u32 {s(t0)}, {s(t0)}, {s(sW1K)}
s_add_u32 {s(sO1)}, {s(t0)}, {KVP}
s_bitcmp1_b32 {s(sW)}, 0
s_cselect_b64 vcc, -1, 0""")
    for ks in range(5, 8):
        a.wlg(f"e{ks}"); a(f"{MF} {v(AV,16)}, {v(WR+4*ks,4)}, {v(PK+4*ks,4)}, {v(AV,16)}")
    for k in range(8): a(f"v_cvt_pk_bf16_f32 {v(AV+k)}, {v(AV+2*k)}, {v(AV+2*k+1)}")
    for k in range(4): a(f"v_cndmask_b32 {v(AV+k)}, {v(AV+k)}, {v(AV+4+k)}, vcc")
    a(f"buffer_store_dwordx4 {v(AV,4)}, {v(vL16)}, {s(RWS,4)}, {s(sO1)} offen sc1", tag="kvst")
    stamp("kv_stored")
    roles34()
    for c, reg in ((0, 2), (1, 3), (2, 0)):
        for g in chunk_dma("O", c, R[reg]): a.add(g)
    def chk():
        lp, dn = newlab("ichk"), newlab("idone")
        a(f"""s_mov_b32 {s(sSPIN)}, 0
{lp}:
v_readfirstlane_b32 {s(sCV)}, {v(vT)}
s_add_u32 {s(sSPIN)}, {s(sSPIN)}, 1
s_cmp_ge_u32 {s(sCV)}, {NINIT}
s_cbranch_scc1 {dn}
global_load_dword {v(vT)}, {v(M+3)}, {s(pDBG,2)} sc1
s_cmp_lt_u32 {s(sSPIN)}, {SPIN_MAX}
s_waitcnt vmcnt(0)
s_cbranch_scc1 {lp}
{dn}:""")
    a.wvm("kvst")
    wave0(chk)
    a.wvm("kvst"); a("s_barrier")
    signal(C1, sH)
    stamp("sig1")
    for g in chunk_dma("O", 3, R[4]): a.add(g)
    XR = AV
    a(f"""v_and_b32 v2, 31, v0
v_mul_u32_u24 v2, 896, v2
v_lshrrev_b32 v3, 5, v0
v_lshl_add_u32 v2, v3, 3, v2
s_mul_i32 {s(t0)}, {s(sTT)}, {RS}
s_lshl_b32 {s(t1)}, {s(sNT)}, 6
s_add_u32 {s(t0)}, {s(t0)}, {s(t1)}""")
    for j in range(4):
        a(f"buffer_load_dwordx2 {v(XR+2*j,2)}, v2, {s(RX,4)}, {s(t0)} offen offset:{16*j}", tag="xres")
    a.add(gemm("q", vAW, R[1], AK))
    hd, body = softmax(AK, False)
    a.add(hd); a.add(body)
    stamp("phiq_done")

vPO, vPG = 4, 5
vAP, vAP2, vAPC, vAPC2 = 6, 7, 8, 9
vAP4, vAPC4 = 11, 12
sOB, sGB = 64, 65
def roles34():
    a(f"""s_lshl_b32 {s(sTT)}, {s(sXCD)}, 3
s_lshr_b32 {s(t0)}, {s(sI)}, 2
s_add_u32 {s(sTT)}, {s(sTT)}, {s(t0)}
s_and_b32 {s(sCG)}, {s(sI)}, 3
s_and_b32 {s(t0)}, {s(sW)}, 1
s_cmp_eq_u32 {s(sCG)}, 3
s_cselect_b32 {s(t0)}, {s(t0)}, {s(sW)}
s_cselect_b32 {s(t1)}, 7, 15
s_lshl_b32 {s(sNT)}, {s(sCG)}, 2
s_add_u32 {s(sNT)}, {s(sNT)}, {s(t0)}
v_lshrrev_b32 v2, 4, v0
v_lshlrev_b32 v3, 2, v2
v_xor_b32 v3, v3, v0
v_and_b32 {v(vPO)}, {s(t1)}, v3
v_and_b32 {v(vPG)}, 15, v3
v_lshlrev_b32 {v(vPO)}, 4, {v(vPO)}
v_lshlrev_b32 {v(vPG)}, 4, {v(vPG)}
v_mul_u32_u24 v3, 896, v2
v_add_u32 {v(vPO)}, {v(vPO)}, v3
v_mul_u32_u24 v3, 3584, v2
v_add_u32 {v(vPG)}, {v(vPG)}, v3
s_mul_i32 {s(sOB)}, {s(sW)}, {4*896}
s_lshl_b32 {s(t0)}, {s(sCG)}, 8
s_add_u32 {s(sOB)}, {s(sOB)}, {s(t0)}
s_min_u32 {s(t0)}, {s(sI)}, 27
s_mul_i32 {s(sROT4)}, {s(t0)}, 37
s_lshr_b32 {s(sROT4)}, {s(sROT4)}, 8
s_mul_i32 {s(t1)}, {s(sROT4)}, 7
s_sub_u32 {s(sCT)}, {s(t0)}, {s(t1)}
s_and_b32 {s(sHALF)}, {s(sXCD)}, 1
s_mul_i32 {s(sFS)}, {s(sHALF)}, 7
s_add_u32 {s(sFS)}, {s(sFS)}, {s(sCT)}
s_lshr_b32 {s(sRB4)}, {s(sXCD)}, 1
s_lshl_b32 {s(sRB4)}, {s(sRB4)}, 2
s_add_u32 {s(sRB4)}, {s(sRB4)}, {s(sROT4)}
s_mul_i32 {s(sGB)}, {s(sW)}, {4*3584}
s_lshl_b32 {s(t0)}, {s(sFS)}, 8
s_add_u32 {s(sGB)}, {s(sGB)}, {s(t0)}""")
    srd(RO, pWO, 448 * 896); srd(RG, pWG, 448 * 3584); srd(RU, pWU, 448 * 3584)

def chunk_dma(m, c, region):
    out = []
    pitch = 896 if m == "O" else 3584
    for j in range(7):
        q = a.sub()
        if j == 0:
            if m == "O":
                q(f"s_add_u32 {s(sO2)}, {s(sOB)}, {c*112*pitch}")
            else:
                q(f"s_add_u32 {s(sO2)}, {s(sROT4)}, {c}\ns_and_b32 {s(sO2)}, {s(sO2)}, 3\ns_mul_i32 {s(sO2)}, {s(sO2)}, {112*pitch}\ns_add_u32 {s(sO2)}, {s(sO2)}, {s(sGB)}")
        q(f"s_add_u32 m0, {s(sW1K)}, {region + j*4096}")
        if j > 0: q(f"s_add_u32 {s(sO2)}, {s(sO2)}, {16*pitch}")
        rs = {"O": RO, "G": RG, "U": RU}[m]
        q(f"buffer_load_dwordx4 {v(vPO if m == 'O' else vPG)}, {s(rs,4)}, {s(sO2)} offen lds", tag=f"{m}{c}")
        out.append(q)
    return out

def chunk_addrs():
    a(f"""v_bfe_u32 v2, v0, 2, 2
v_xor_b32 v3, {s(sW)}, v2
v_lshlrev_b32 v3, 6, v3
v_lshl_add_u32 v3, v2, 8, v3
v_bfe_u32 v2, v0, 4, 1
v_lshl_add_u32 v3, v2, 5, v3
v_and_b32 v2, 3, v0
v_lshl_add_u32 {v(vAPC)}, v2, 3, v3
v_lshrrev_b32 v2, 5, v0
v_lshl_add_u32 {v(vAP)}, v2, 10, {v(vAPC)}
v_add_u32 {v(vAP2)}, {R[2]}, {v(vAP)}
v_add_u32 {v(vAPC2)}, {R[2]}, {v(vAPC)}
v_add_u32 {v(vAP4)}, {R[4]}, {v(vAP)}
v_add_u32 {v(vAPC4)}, {R[4]}, {v(vAPC)}""")

WOF = 16
def chunk_read(m, c, reg):
    q = a.sub()
    ad, adc, off = {0: (vAP, vAPC, 0), 1: (vAP, vAPC, RS), 2: (vAP2, vAPC2, 0), 3: (vAP2, vAPC2, RS), 4: (vAP4, vAPC4, 0)}[reg]
    if m == "O":
        for hl in range(4):
            for sf in range(2):
                for u in range(2):
                    d = WOF + 4 * (8 * c + 2 * hl + sf) + 2 * u
                    q(f"ds_read_b64_tr_b16 {v(d,2)}, {v(adc if (sf and u) else ad)} offset:{off + (28*hl+16*sf+8*u)*256}", tag=f"r{m}{c}")
    else:
        base = 0 if m == "G" else 112
        for sl in range(7):
            for u in range(2):
                q(f"ds_read_b64_tr_b16 {ag(base+4*(7*c+sl)+2*u,2)}, {v(ad)} offset:{off + (16*sl+8*u)*256}", tag=f"r{m}{c}")
    return q

CSG, CSU = 224, 228
def colsum(m, acc, ones):
    base, dst = (0, CSG) if m == "G" else (112, CSU)
    for k in range(4): a(f"v_mov_b32 {v(ones+k)}, {s(sONES)}")
    for sp in range(28):
        a(f"{MF} {v(acc,16)}, {v(ones,4)}, {ag(base+4*sp,4)}, {v(acc,16) if sp else 0}")
    a(f"""v_cvt_pk_bf16_f32 {v(ones)}, {v(acc)}, {v(acc)}
v_and_b32 {v(ones+1)}, 0xffff0000, {v(ones)}
v_sub_f32 {v(ones+1)}, {v(acc)}, {v(ones+1)}
v_cvt_pk_bf16_f32 {v(ones+1)}, {v(ones+1)}, 0
v_and_b32 {v(ones)}, {v(ones)}, {v(vMLO)}
v_and_b32 {v(ones+1)}, {v(ones+1)}, {v(vMLO)}
v_accvgpr_write_b32 {ag(dst)}, {v(ones)}
v_accvgpr_write_b32 {ag(dst+1)}, {v(ones+1)}
v_accvgpr_write_b32 {ag(dst+2)}, 0
v_accvgpr_write_b32 {ag(dst+3)}, 0""")

PL = 144
AH = 208
SUM = 240
def p2():
    XR = AV
    chunk_addrs()
    a.wvm("xres", "O3")
    for k in range(8):
        a(f"v_lshlrev_b32 {v(AH+2*k)}, 16, {v(XR+k)}\nv_and_b32 {v(AH+2*k+1)}, 0xffff0000, {v(XR+k)}")
    a("s_barrier")
    for c, reg in ((0, 2), (1, 3), (2, 0), (3, 4)): a.add(chunk_read("O", c, reg))
    for k in range(8): a(f"v_mov_b32 {v(SUM+k)}, 0")
    a(f"""s_lshl_b32 {s(sO1)}, {s(sH)}, 16
s_add_u32 {s(sO1)}, {s(sO1)}, {s(sW1K)}
s_add_u32 {s(sO1)}, {s(sO1)}, {KVP}
s_lshl_b32 {s(t1)}, {s(sRB)}, 13
s_waitcnt lgkmcnt(0)""")
    stamp("wo_read")
    poll(C1, sH, 16)
    a("s_barrier")
    stamp("sync1")
    for p in range(16):
        a(f"s_and_b32 {s(t1)}, {s(t1)}, 0xffff\ns_add_u32 {s(t0)}, {s(sO1)}, {s(t1)}")
        a(f"buffer_load_dwordx4 {v(PL+4*p,4)}, {v(vL16)}, {s(RWS,4)}, {s(t0)} offen sc1", tag=f"P{p}")
        a(f"s_add_u32 {s(t1)}, {s(t1)}, 4096")
    gd = []
    for c in range(2): gd += chunk_dma("G", c, R[c])
    for p in range(16):
        a.wvm(f"P{p}")
        for k in range(4):
            a(f"v_dot2c_f32_bf16 {v(SUM+2*k)}, {s(sSELLO)}, {v(PL+4*p+k)}\nv_dot2c_f32_bf16 {v(SUM+2*k+1)}, {s(sSELHI)}, {v(PL+4*p+k)}")
        if p < len(gd): a.add(gd[p])
    a(f"v_add_u32 v2, {KVF}, {v(vL16)}\nv_add_u32 v3, {s(sW1K)}, v2")
    for k in range(4): a(f"v_cvt_pk_bf16_f32 {v(SUM+k)}, {v(SUM+2*k)}, {v(SUM+2*k+1)}")
    a(f"ds_write_b128 v3, {v(SUM,4)}\ns_waitcnt lgkmcnt(0)\ns_barrier")
    KF, NU = PL, PL + 16
    for f in range(4): a(f"ds_read_b128 {v(KF+4*f,4)}, v2 offset:{f*1024}", tag=f"kf{f}")
    a(f"""s_lshl_b32 {s(t0)}, {s(sRB)}, 2
s_add_u32 {s(t0)}, {s(t0)}, {s(sW)}
s_lshl_b32 {s(t0)}, {s(t0)}, 4
s_add_u32 {s(t0)}, {s(t0)}, {s(sH)}
s_lshl_b32 {s(t0)}, {s(t0)}, 11
s_add_u32 {s(sO1)}, {s(t0)}, {OB}""")
    for f in range(4):
        a.wlg(f"kf{f}"); a(f"{MF} {v(NU,16)}, {v(KF+4*f,4)}, {v(PH+4*f,4)}, {v(NU,16) if f else 0}")
    a(f"""v_add_f32 v2, {f2u(1e-6)}, {v(NU+12)}
v_rcp_f32 v2, v2
v_mov_b32 v3, v2
v_permlane32_swap_b32 v2, v3
v_mov_b32 v2, v3""")
    for k in range(8):
        a(f"v_pk_mul_f32 {v(NU+2*k,2)}, {v(NU+2*k,2)}, v[2:3]")
    for k in range(8): a(f"v_cvt_pk_bf16_f32 {v(KF+k)}, {v(NU+2*k)}, {v(NU+2*k+1)}")
    a(f"v_and_b32 {v(KF+6)}, {v(KF+6)}, {v(vMLO)}\nv_and_b32 {v(KF+7)}, {v(KF+7)}, {v(vMLO)}")
    for f in range(2):
        a(f"buffer_store_dwordx4 {v(KF+4*f,4)}, {v(vL16)}, {s(RWS,4)}, {s(sO1)} offen offset:{f*1024} sc1", tag="ost")
    stamp("o_stored")
    for c in range(2, 4):
        for g in chunk_dma("G", c, R[c]): a.add(g)
    a.wvm("ost"); a("s_barrier")
    signal(C2, sRB)
    stamp("sig2")
    for c in range(2): a.add(chunk_read("G", c, c))
    a.wvm("G3"); a("s_barrier")
    for c in range(2, 4): a.add(chunk_read("G", c, c))
    a("s_waitcnt lgkmcnt(0)")
    colsum("G", PL, PL + 16)
    stamp("g_read")

def p3():
    a(f"""s_lshr_b32 {s(t2)}, {s(sTT)}, 2
s_lshl_b32 {s(sO1)}, {s(sTT)}, 15
s_lshl_b32 {s(t3)}, {s(sW)}, 12
s_add_u32 {s(sO1)}, {s(sO1)}, {s(t3)}
s_add_u32 {s(sO1)}, {s(sO1)}, {OB}
v_add_u32 v2, {R[4]}, {v(vL16)}""")
    poll(C2, t2, 16)
    a("s_barrier")
    stamp("sync2")
    for g in range(2):
        a(f"s_add_u32 m0, {s(t3)}, {R[4] + g*16384}")
        if g: a(f"s_add_u32 {s(sO1)}, {s(sO1)}, 16384")
        for j in range(4):
            a(f"buffer_load_dwordx4 {v(vL16)}, {s(RWS,4)}, {s(sO1)} offen offset:{j*1024} sc1 lds", tag=f"ot{g}")
    ud = []
    for c in range(2): ud += chunk_dma("U", c, R[c])
    for g_ in ud[:4]: a.add(g_)
    a(f"""s_mul_i32 {s(t0)}, {s(sTT)}, {RS}
s_lshl_b32 {s(t1)}, {s(sNT)}, 11
s_add_u32 {s(t0)}, {s(t0)}, {s(t1)}
s_add_u32 {s(sO1)}, {s(t0)}, {HB}
s_mul_i32 {s(t0)}, {s(sTT)}, 14
s_add_u32 {s(t0)}, {s(t0)}, {s(sNT)}
s_lshl_b32 {s(t0)}, {s(t0)}, 8
s_add_u32 {s(t3)}, {s(t0)}, {ST}
v_mov_b32 {v(SUM)}, 0
v_mov_b32 {v(SUM+1)}, 0
v_lshlrev_b32 v3, 2, v0""")
    g = a.sub()
    for half in range(2):
        g.wvm(f"ot{half}"); g("s_barrier")
        def rd(ks): g(f"ds_read_b128 {v(PL+4*(ks%16),4)}, v2 offset:{ks*1024}", tag=f"of{ks}")
        PD = 6
        for ks in range(16*half, 16*half + PD): rd(ks)
        for ks in range(16*half, 16*half + 16):
            g.wlg(f"of{ks}")
            g(f"{MF} {v(AH,16)}, {v(WOF+4*ks,4)}, {v(PL+4*(ks%16),4)}, {v(AH,16)}")
            if ks + PD < 16*half + 16: rd(ks + PD)
    fl = a.sub()
    for g_ in ud[4:]: fl.add(g_)
    a.add(merge(g, fl, budget=28))
    for k in range(8): a(f"v_cvt_pk_bf16_f32 {v(PL+k)}, {v(AH+2*k)}, {v(AH+2*k+1)}")
    for f in range(2):
        a(f"buffer_store_dwordx4 {v(PL+4*f,4)}, {v(vL16)}, {s(RWS,4)}, {s(sO1)} offen offset:{f*1024} sc1", tag="hst")
    for k in range(8):
        a(f"v_dot2c_f32_bf16 {v(SUM)}, {s(sONES)}, {v(PL+k)}\nv_dot2c_f32_bf16 {v(SUM+1)}, {v(PL+k)}, {v(PL+k)}")
    a(f"v_permlane32_swap_b32 {v(SUM)}, {v(SUM+1)}\nv_add_f32 {v(SUM)}, {v(SUM)}, {v(SUM+1)}")
    a(f"buffer_store_dword {v(SUM)}, v3, {s(RWS,4)}, {s(t3)} offen sc1", tag="hst")
    stamp("h_stored")
    for c in range(2, 4):
        for g_ in chunk_dma("U", c, R[c]): a.add(g_)
    a.wvm("hst"); a("s_barrier")
    signal(C3, t2)
    a(f"s_cmp_ge_u32 {s(sI)}, 28\ns_cbranch_scc1 L_fin")
    stamp("sig3")
    for c in range(2): a.add(chunk_read("U", c, c))
    a.wvm("U3"); a("s_barrier")
    for c in range(2, 4): a.add(chunk_read("U", c, c))
    a("s_waitcnt lgkmcnt(0)")
    colsum("U", PL, PL + 16)
    stamp("u_read")

AC = 16
BR = 80
SR = 96
HR = 104
vH0, vH2, vSX = 2, 3, 4
vDO, vAD0, vAD1 = 5, 6, 7
def p4():
    a(f"""s_lshl_b32 {s(t2)}, {s(sRB4)}, 2
s_add_u32 {s(t0)}, {s(sW)}, {s(sROT4)}
s_and_b32 {s(t0)}, {s(t0)}, 3
s_mul_i32 {s(t0)}, {s(t0)}, 7168
s_mul_i32 {s(sO1)}, {s(t2)}, {RS}
s_add_u32 {s(sO1)}, {s(sO1)}, {s(t0)}
s_add_u32 {s(sO1)}, {s(sO1)}, {HB}
s_mul_i32 {s(t3)}, {s(sW)}, 7168
s_add_u32 {s(t1)}, {s(t2)}, {s(sW)}
s_mul_i32 {s(t1)}, {s(t1)}, {14*256}
s_add_u32 {s(sO2)}, {s(t1)}, {ST}
v_lshlrev_b32 v8, 2, v0
v_add_u32 {v(vH2)}, {R[2]}, {v(vL16)}
v_add_u32 {v(vSX)}, {STX}, {v(vL16)}""")
    poll(C3, sRB4, 16)
    a("s_barrier")
    stamp("sync3")
    def hdma(i):
        q = a.sub()
        for g in range(2):
            q(f"s_add_u32 m0, {s(t3)}, {R[i] + g*4096}")
            q(f"s_add_u32 {s(t0)}, {s(sO1)}, {i*RS + g*4096}")
            for j in range(4 - g):
                q(f"buffer_load_dwordx4 {v(vL16)}, {s(RWS,4)}, {s(t0)} offen offset:{j*1024} sc1 lds", tag=f"h{i}")
        return q
    a.add(hdma(0))
    SL = AC + 32
    for n in range(14):
        a(f"buffer_load_dword {v(SL+n)}, v8, {s(RWS,4)}, {s(sO2)} offen offset:{n*256} sc1", tag="stl")
    a.add(hdma(1))
    a(f"""s_mul_i32 {s(t0)}, {s(t2)}, {112*1024}
s_lshl_b32 {s(t1)}, {s(sFS)}, 13
s_add_u32 {s(t0)}, {s(t0)}, {s(t1)}
s_lshl_b32 {s(t1)}, {s(sW)}, 11
s_add_u32 {s(t0)}, {s(t0)}, {s(t1)}
s_add_u32 {s(sO2)}, {s(t0)}, {ACT}""")
    st = a.sub()
    st.wvm("stl")
    for n in range(1, 14): st(f"v_add_f32 {v(SL)}, {v(SL)}, {v(SL+n)}")
    st(f"""v_mul_f32 {v(SL)}, {f2u(1/448)}, {v(SL)}
v_mov_b32 {v(SL+1)}, {v(SL)}
v_permlane32_swap_b32 {v(SL)}, {v(SL+1)}
v_fma_f32 {v(SL+1)}, -{v(SL)}, {v(SL)}, {v(SL+1)}
v_max_f32 {v(SL+1)}, 0, {v(SL+1)}
v_add_f32 {v(SL+7)}, {f2u(1e-5)}, {v(SL+1)}
v_rsq_f32 {v(SL+6)}, {v(SL+7)}
v_sub_f32 {v(SL)}, 0, {v(SL)}
v_mul_f32 {v(SL+6)}, {f2u(-LOG2E)}, {v(SL+6)}
v_cvt_pk_bf16_f32 {v(SL+5)}, {v(SL)}, 0
v_lshlrev_b32 {v(SL+2)}, 16, {v(SL+5)}
v_sub_f32 {v(SL+2)}, {v(SL)}, {v(SL+2)}
v_cvt_pk_bf16_f32 {v(SL+4)}, {v(SL)}, {v(SL+2)}
v_and_b32 {v(SL+6)}, 0xffffff7f, {v(SL+6)}
v_and_b32 {v(SL+7)}, 0xffffff7f, {v(SL+7)}
v_add_u32 v8, {s(sW1K)}, {v(vSX)}""")
    st(f"ds_write_b128 v8, {v(SL+4,4)}", tag="stw")

    def epilogue(i):
        e = a.sub()
        G, U = AC + 32 * (i % 2), AC + 32 * (i % 2) + 16
        c1, s2 = SR + 4 * (i % 2) + 2, SR + 4 * (i % 2) + 3
        for k0 in range(0, 16, 4):
            ks = range(k0, k0 + 4)
            for k in ks: e(f"v_mul_f32 {v(U+k)}, {v(U+k)}, {v(G+k)}\nv_mul_f32 {v(G+k)}, {v(G+k)}, {v(c1)}")
            for k in ks: e(f"v_exp_f32 {v(G+k)}, {v(G+k)}")
            for k in ks: e(f"v_fma_f32 {v(G+k)}, {v(G+k)}, {v(s2)}, {v(s2)}")
            for k in ks: e(f"v_rcp_f32 {v(G+k)}, {v(G+k)}")
            for k in ks: e(f"v_mul_f32 {v(U+k)}, {v(U+k)}, {v(G+k)}")
            for k in (k0, k0 + 2): e(f"v_cvt_pk_bf16_f32 {v(G+k//2)}, {v(U+k)}, {v(U+k+1)}")
            if k0 % 8 == 4:
                f = k0 // 8
                if f == 0: e(f"s_add_u32 {s(t1)}, {s(sO2)}, {i*112*1024}")
                e(f"buffer_store_dwordx4 {v(G+4*f,4)}, {v(vL16)}, {s(RWS,4)}, {s(t1)} offen offset:{f*1024} sc1", tag=f"ast{i}")
        return e

    for i in range(4):
        g = a.sub()
        G, U = AC + 32 * (i % 2), AC + 32 * (i % 2) + 16
        ad, off = (vL16, R[i]) if i < 2 else (vH2, R[i] - R[2])
        g.wvm(f"h{i}"); g("s_barrier")
        def rd(sp): g(f"ds_read_b128 {v(BR+4*(sp%4),4)}, {v(ad)} offset:{off+sp*1024}", tag=f"hf{i}_{sp}")
        for sp in range(3): rd(sp)
        for sp in range(28):
            g.wlg(f"hf{i}_{sp}")
            g(f"{MF} {v(G,16)}, {ag(4*sp,4)}, {v(BR+4*(sp%4),4)}, {v(G,16) if sp else 0}")
            if sp + 3 < 28: rd(sp + 3)
            if i == 0 and sp == 20:
                g.wlg("stw"); g("s_barrier")
            if sp == 22:
                g(f"ds_read_b128 {v(SR+4*(i%2),4)}, {v(vSX)} offset:{i*1024}", tag=f"sr{i}")
            g(f"{MF} {v(U,16)}, {ag(112+4*sp,4)}, {v(BR+4*(sp%4),4)}, {v(U,16) if sp else 0}")
        g.wlg(f"sr{i}")
        g(f"{MF} {v(G,16)}, {ag(CSG,4)}, {v(SR+4*(i%2),4)}, {v(G,16)}")
        g(f"{MF} {v(U,16)}, {ag(CSU,4)}, {v(SR+4*(i%2),4)}, {v(U,16)}")
        fl = a.sub()
        if i == 0:
            fl.add(hdma(2)); fl.add(st); fl.add(hdma(3))
            a.add(merge(g, fl, budget=28))
        else:
            a.add(merge(g, epilogue(i - 1), start=2))
        stamp(f"t{i}")
    a.add(epilogue(3))
    stamp("act_stored")

def p5():
    srd(RW, pWD, 1792 * 896); srd(RX, pOUT, 2048 * 896)
    a(f"""v_lshrrev_b32 v8, 3, v0
v_bfe_u32 v9, v0, 4, 1
v_lshlrev_b32 v9, 2, v9
v_xor_b32 v9, v9, v0
v_and_b32 v9, 7, v9
v_lshlrev_b32 v9, 4, v9
v_mul_u32_u24 v8, 896, v8
v_add_u32 {v(vDO)}, v8, v9
s_mul_i32 {s(t3)}, {s(sW)}, 40960
v_bfe_u32 v8, v0, 2, 2
v_lshrrev_b32 v9, 5, v0
v_lshl_add_u32 v9, v9, 2, v8
v_lshlrev_b32 v9, 7, v9
v_lshrrev_b32 v8, 1, v8
v_lshl_add_u32 v9, v8, 6, v9
v_bfe_u32 v8, v0, 4, 1
v_lshl_add_u32 v9, v8, 5, v9
v_and_b32 v8, 3, v0
v_lshl_add_u32 v9, v8, 3, v9
v_add_u32 {v(vAD0)}, {s(t3)}, v9
v_xor_b32 {v(vAD1)}, 64, {v(vAD0)}
s_mul_i32 {s(sO1)}, {s(sW)}, {448*896}
s_lshl_b32 {s(t0)}, {s(sCT)}, 7
s_add_u32 {s(sO1)}, {s(sO1)}, {s(t0)}""")
    a.wvm("ast3"); a("s_barrier")
    signal(C4, sRB4)
    stamp("sig4")
    def ddma(b):
        for j in range(2):
            a(f"s_add_u32 m0, {s(t3)}, {(b%20)*2048 + j*1024}\ns_add_u32 {s(t0)}, {s(sO1)}, {(16*b+8*j)*896}")
            a(f"buffer_load_dwordx4 {v(vDO)}, {s(RW,4)}, {s(t0)} offen lds", tag=f"D{b}")
    def dread(b):
        a.wvm(f"D{b}")
        for nt in range(2):
            for u in range(2):
                a(f"ds_read_b64_tr_b16 {ag(8*b+4*nt+2*u,2)}, {v(vAD0+nt)} offset:{(b%20)*2048+u*1024}", tag=f"dr{b}")
    a(f"""v_lshrrev_b32 v8, 3, v0
s_lshl_b32 {s(t0)}, {s(sW)}, 3
v_add_u32 v8, {s(t0)}, v8
v_bfe_u32 v9, v0, 1, 2
v_lshlrev_b32 v9, 10, v9
v_lshl_add_u32 v9, v8, 4, v9
v_and_b32 v10, 1, v0
v_lshl_add_u32 v9, v10, 3, v9
s_lshl_b32 {s(t2)}, {s(sRB4)}, 2
s_add_u32 {s(t2)}, {s(t2)}, {s(sHALF)}
s_mul_i32 {s(t0)}, {s(t2)}, {RS}
s_lshl_b32 {s(t1)}, {s(sCT)}, 12
s_add_u32 {s(t0)}, {s(t0)}, {s(t1)}
s_add_u32 {s(t0)}, {s(t0)}, {HB}
s_add_u32 {s(t1)}, {s(t0)}, {2*RS}""")
    for tb in range(2):
        for hh in range(2):
            a(f"buffer_load_dwordx2 {v(HR+4*tb+2*hh,2)}, v9, {s(RWS,4)}, {s(t0+tb)} offen offset:{hh*512} sc1", tag="hres")
    for b in range(6): ddma(b)
    for b in range(28):
        if b + 6 < 28:
            if b + 6 >= 20: a.wlg(f"dr{b+6-20}")
            ddma(b + 6)
        dread(b)
    vOUT, vRW, vRR = 10, 11, 12
    QS = 1088
    a(f"""v_mul_u32_u24 {v(vOUT)}, 896, v8
v_and_b32 v9, 7, v0
v_lshl_add_u32 {v(vOUT)}, v9, 4, {v(vOUT)}
v_mul_u32_u24 {v(vRR)}, {QS}, v9
v_lshl_add_u32 {v(vRR)}, v8, 4, {v(vRR)}
s_mul_i32 {s(t0)}, {s(sW)}, {8*QS}
v_add_u32 {v(vRW)}, {s(t0)}, {v(vL16)}
s_mul_i32 {s(sO1)}, {s(t2)}, {112*1024}
s_add_u32 {s(sO1)}, {s(sO1)}, {s(sWB)}
s_add_u32 {s(sO1)}, {s(sO1)}, {ACT}
s_mul_i32 {s(sO2)}, {s(t2)}, {RS}
s_lshl_b32 {s(t0)}, {s(sCT)}, 7
s_add_u32 {s(sO2)}, {s(sO2)}, {s(t0)}
s_waitcnt lgkmcnt(0)""")
    stamp("wd_read")
    poll(C4, sRB4, 14)
    a("s_barrier")
    stamp("sync4")
    AF = 112
    NS = 32
    def ald(n):
        tb, sp = n // 28, n % 28
        if sp % 4 == 0: a(f"s_add_u32 {s(t0)}, {s(sO1)}, {tb*2*112*1024 + sp*1024}")
        a(f"buffer_load_dwordx4 {v(AF+4*(n%NS),4)}, {v(vL16)}, {s(RWS,4)}, {s(t0)} offen offset:{(sp%4)*1024} sc1", tag=f"A{n}")
    PD = 12
    for n in range(PD): ald(n)
    def reduce_write(tb):
        for q in range(8):
            a(f"ds_write_b128 {v(vRW)}, {v(AC+32*tb+4*q,4)} offset:{tb*4*8*QS + q*QS}", tag=f"rw{tb}")
    def reduce_finish(tb):
        T = AC + 32 * tb
        a.wlg(f"rw{tb}"); a("s_barrier")
        for w in range(4):
            for hh in range(2):
                a(f"ds_read_b128 {v(T+8*w+4*hh,4)}, {v(vRR)} offset:{tb*4*8*QS + w*8*QS + hh*512}", tag=f"rr{tb}_{w}")
        a.wvm("hres")
        for k in range(4):
            a(f"v_lshlrev_b32 {v(BR+2*k)}, 16, {v(HR+4*tb+k)}\nv_and_b32 {v(BR+2*k+1)}, 0xffff0000, {v(HR+4*tb+k)}")
        for w in range(4):
            a.wlg(f"rr{tb}_{w}")
            for k in range(4): a(f"v_pk_add_f32 {v(BR+2*k,2)}, {v(BR+2*k,2)}, {v(T+8*w+2*k,2)}")
        for k in range(4): a(f"v_cvt_pk_bf16_f32 {v(BR+8+k)}, {v(BR+2*k)}, {v(BR+2*k+1)}")
        if tb: a(f"s_add_u32 {s(sO2)}, {s(sO2)}, {2*RS}")
        a(f"buffer_store_dwordx4 {v(BR+8,4)}, {v(vOUT)}, {s(RX,4)}, {s(sO2)} offen")
    for n in range(56):
        tb, sp = n // 28, n % 28
        if n + PD < 56: ald(n + PD)
        a.wvm(f"A{n}")
        for nt in range(2):
            acc = AC + 32 * tb + 16 * nt
            a(f"{MF} {v(acc,16)}, {ag(8*sp+4*nt,4)}, {v(AF+4*(n%NS),4)}, {v(acc,16) if sp else 0}")
        if n == 30: reduce_write(0)
        if n == 40: reduce_finish(0)
    reduce_write(1)
    reduce_finish(1)
    stamp("end")
    if STAMPS: a("s_memrealtime s[92:93]\ns_waitcnt lgkmcnt(0)\nv_writelane_b32 v255, s92, 61")

phases = [p1, p2, p3, p4, p5]
for k, p in enumerate(phases):
    p()
    if STOP == k + 1: break
a("L_fin:")
if STAMPS:
    a(f"""s_lshl_b32 {s(t0)}, s2, 2
s_add_u32 {s(t0)}, {s(t0)}, {s(sW)}
s_lshl_b32 {s(t0)}, {s(t0)}, 8
s_add_u32 {s(t0)}, {s(t0)}, {STAMP_OFF}
s_waitcnt vmcnt(0)
s_memrealtime s[92:93]
s_waitcnt lgkmcnt(0)
v_writelane_b32 v255, s92, 62
v_lshlrev_b32 v2, 2, v0
buffer_store_dword v255, v2, {s(RWS,4)}, {s(t0)} offen""")
a("L_end:\ns_endpgm")

hdr = open(f"cdna_kernels/{NAME}.s.ref").read().split("; Override launch")[0]
txt = hdr + f"""; @launch grid=(256,1,1) block=(256,1,1) lds={LDS_BYTES}
.amdgcn_target "amdgcn-amd-amdhsa--gfx950"
.text
.globl {NAME}_kernel
.p2align 8
.type {NAME}_kernel,@function
{NAME}_kernel:
""" + finalize(a, verbose=True) + f""".section .rodata,"a"
.p2align 6
.amdhsa_kernel {NAME}_kernel
  .amdhsa_next_free_vgpr 512
  .amdhsa_next_free_sgpr 102
  .amdhsa_accum_offset 256
  .amdhsa_group_segment_fixed_size 0
  .amdhsa_kernarg_size 88
  .amdhsa_user_sgpr_count 2
  .amdhsa_user_sgpr_kernarg_segment_ptr 1
  .amdhsa_system_sgpr_workgroup_id_x 1
.end_amdhsa_kernel
"""
open(OUT, "w").write(txt)
if STAMPS: open(OUT + ".names", "w").write("\n".join(STAMP_NAMES))
```

```python
import sys
from asmlib import *

NAME = "sequential_preLN__linear_kernel_hedgehog__swiglu_ffn__prompt"
STAMPS = "--stamps" in sys.argv
STOP = None
for a_ in sys.argv:
    if a_.startswith("--stop="): STOP = int(a_.split("=")[1])
OUT = [a_ for a_ in sys.argv[1:] if not a_.startswith("--")]
OUT = OUT[0] if OUT else f"cdna_kernels/{NAME}.s"

CNT = 0
KVP = 0x10000
OB = KVP + (1 << 20)
HB = OB + (2 << 20)
ST = HB + (2 << 20)
ACT = ST + (1 << 18)
WS_USED = ACT + (7 << 20)
STAMP_OFF = 16 << 20
WS_SIZE = 32 << 20
C1, C2, C3, C4 = 0, 16, 32, 48
NINIT = 14
RS = 28672
R = [RS * i for i in range(5)]
SP = RS * 5
WPHI = SP + 4096
KVF = WPHI + 2048
STX = 163840 - 4096
LDS_BYTES = 163840
EXW = 6656
SPIN_MAX = 1 << 17
LOG2E = 1.4426950408889634

import struct
def f2u(x): return "0x%08x" % struct.unpack("<I", struct.pack("<f", x))[0]
def v(a, n=1): return f"v{a}" if n == 1 else f"v[{a}:{a+n-1}]"
def ag(a, n=1): return f"a{a}" if n == 1 else f"a[{a}:{a+n-1}]"
def s(a, n=1): return f"s{a}" if n == 1 else f"s[{a}:{a+n-1}]"
MF = "v_mfma_f32_32x32x16_bf16"

sW = 3
pX, pQKV, pPHI, pWO, pWG, pWU, pWD, pOUT, pDBG, pWS = 4, 6, 8, 10, 14, 16, 18, 20, 22, 24
t0, t1 = 26, 27
RX, RW, RP, RWS, RO, RG, RU = 28, 32, 36, 40, 44, 48, 52
sH, sRB, sROT, sI, sXCD = 56, 57, 58, 59, 60
sXB, sXO, sXE = 61, 62, 63
sWO = 64
sW1K = 71
sWB = 72
sTT, sCG, sNT = 73, 74, 75
sRB4, sFS, sROT4, sCT, sHALF = 76, 77, 78, 79, 80
sSELLO, sSELHI, sONES, sL2E = 81, 82, 83, 84
sCA = 86
sCV, sSPIN = 88, 89
t2, t3 = 12, 13
sO1, sO2 = 90, 91
sSTAMP = 92

a = Asm()
nstamp = [0]
PADAT = None
for a_ in sys.argv:
    if a_.startswith("--padat="): PADAT = a_.split("=")[1].split(":")
def stamp(name):
    if PADAT and PADAT[0] == name:
        l = newlab("pad")
        a(f"{l}:\ns_memrealtime s[92:93]\ns_waitcnt lgkmcnt(0)\ns_sub_u32 s92, s92, s94\ns_cmp_lt_u32 s92, {PADAT[1]}\ns_cbranch_scc1 {l}")
    if not STAMPS: return
    k = nstamp[0]; nstamp[0] += 1
    a(f"s_memtime s[92:93]\ns_memrealtime s[96:97]\ns_waitcnt lgkmcnt(0)\nv_writelane_b32 v255, s92, {k}\nv_writelane_b32 v254, s96, {k}")
    STAMP_NAMES.append(name)
STAMP_NAMES = []

def srd(r, p, size):
    a(f"s_mov_b32 {s(r)}, {s(p)}\ns_mov_b32 {s(r+1)}, {s(p+1)}\ns_mov_b32 {s(r+2)}, {size}\ns_mov_b32 {s(r+3)}, 0x20000")

lab = [0]
def newlab(p):
    lab[0] += 1
    return f"L_{p}_{lab[0]}"

def wave0(body):
    l = newlab("w0")
    a(f"s_cmp_lg_u32 {s(sW)}, 0\ns_cbranch_scc1 {l}")
    a.cond = True
    body()
    a.cond = False
    a(f"{l}:")

def cnt_addr(base, idx_sgpr, extra=0):
    a(f"s_lshl_b32 {s(t0)}, {s(idx_sgpr)}, 7\ns_add_u32 {s(t0)}, {s(t0)}, {CNT + (base + extra) * 128}")
    a(f"s_add_u32 {s(sCA)}, {s(pWS)}, {s(t0)}\ns_addc_u32 {s(sCA+1)}, {s(pWS+1)}, 0")

def signal(base, idx_sgpr):
    def body():
        cnt_addr(base, idx_sgpr)
        a(f"s_mov_b32 {s(sCV)}, 1\ns_atomic_add {s(sCV)}, {s(sCA,2)}, 0")
    wave0(body)

def spin(addr, n, load=False):
    lp, dn = newlab("poll"), newlab("done")
    rd = f"s_load_dword {s(sCV)}, {s(addr,2)}, 0 glc" if load else f"s_mov_b32 {s(sCV)}, 0\ns_atomic_add {s(sCV)}, {s(addr,2)}, 0 glc"
    a(f"""s_mov_b32 {s(sSPIN)}, 0
s_waitcnt lgkmcnt(0)
{lp}:
{rd}
s_add_u32 {s(sSPIN)}, {s(sSPIN)}, 1
s_waitcnt lgkmcnt(0)
s_cmp_ge_u32 {s(sCV)}, {n}
s_cbranch_scc1 {dn}
s_cmp_lt_u32 {s(sSPIN)}, {SPIN_MAX}
s_cbranch_scc1 {lp}
{dn}:""")

def poll(base, idx_sgpr, n):
    def body():
        cnt_addr(base, idx_sgpr)
        spin(sCA, n)
    wave0(body)

vL = 0
vL16 = 1
vXO = 2
vAX = 6
vWOF = 10
vAW = 11
vAWK = 12
vMLO = 13
vMF = 14
vT = 15
XF = 16
WR = 128
AK = 160
AV = 176
PK = 192
EM = 208
PH = 224
M = 240
WP = ag(232)

def p1():
    if PADAT: a("s_memrealtime s[94:95]")
    a(f"""s_cmp_ge_u32 s2, 256
s_cbranch_scc1 L_end
s_load_dwordx16 s[4:19], s[0:1], 0
s_load_dwordx4 s[20:23], s[0:1], 64
s_load_dwordx2 s[24:25], s[0:1], 80
v_lshrrev_b32 v1, 6, v0
v_and_b32 v0, 63, v0
v_readfirstlane_b32 {s(sW)}, v1
s_and_b32 {s(sXCD)}, s2, 7
s_lshr_b32 {s(sI)}, s2, 3
s_and_b32 {s(t0)}, {s(sI)}, 3
s_lshr_b32 {s(t1)}, {s(sI)}, 2
s_lshr_b32 {s(sRB)}, {s(sXCD)}, 2
s_lshl_b32 {s(sRB)}, {s(sRB)}, 3
s_add_u32 {s(sRB)}, {s(sRB)}, {s(t1)}
s_lshl_b32 {s(sROT)}, {s(t0)}, 1
s_add_u32 {s(sROT)}, {s(sROT)}, {s(t1)}
s_sub_u32 {s(sH)}, {s(sROT)}, 7
s_cmp_ge_u32 {s(sROT)}, 7
s_cselect_b32 {s(sROT)}, {s(sH)}, {s(sROT)}
s_and_b32 {s(sH)}, {s(sXCD)}, 3
s_lshl_b32 {s(sH)}, {s(sH)}, 2
s_add_u32 {s(sH)}, {s(sH)}, {s(t0)}
s_lshl_b32 {s(sXB)}, {s(sRB)}, 2
s_add_u32 {s(sXB)}, {s(sXB)}, {s(sW)}
s_mul_i32 {s(sXB)}, {s(sXB)}, {RS}
s_mul_i32 {s(sWB)}, {s(sW)}, {RS}
s_lshl_b32 {s(sXO)}, {s(sROT)}, 7
s_add_u32 {s(sXO)}, {s(sXO)}, {s(sXB)}
s_add_u32 {s(sXE)}, {s(sXB)}, 896
v_lshrrev_b32 v6, 3, v0
v_and_b32 v7, 7, v0
v_lshrrev_b32 v8, 4, v0
v_xor_b32 v7, v7, v8
v_lshlrev_b32 v7, 4, v7
v_mul_u32_u24 v6, 896, v6
v_add_u32 v2, v6, v7
v_xor_b32 v3, 64, v2
v_add_u32 v3, 6144, v3
v_add_u32 v4, 12288, v2
v_add_u32 v5, 12288, v3
v_lshlrev_b32 {v(vL16)}, 4, v0
s_waitcnt lgkmcnt(0)""")
    if STAMPS:
        a("v_mov_b32 v255, 0\ns_memrealtime s[92:93]\ns_waitcnt lgkmcnt(0)\nv_writelane_b32 v255, s92, 63")
    stamp("start")
    srd(RX, pX, 2048 * 896)

    def xdma(c):
        q = a.sub()
        q(f"s_add_u32 m0, {s(sWB)}, {c*4096}")
        if c > 0:
            q(f"s_add_u32 {s(sXO)}, {s(sXO)}, 128\ns_cmp_eq_u32 {s(sXO)}, {s(sXE)}\ns_cselect_b32 {s(sXO)}, {s(sXB)}, {s(sXO)}")
        for j in range(4):
            q(f"buffer_load_dwordx4 {v(vXO+j)}, {s(RX,4)}, {s(sXO)} offen offset:{1024*j} lds", tag=f"X{c}")
        return q
    for c in range(3): a.add(xdma(c))

    srd(RW, pQKV, 448 * 2688); srd(RP, pPHI, 16 * 1568); srd(RWS, pWS, WS_SIZE)
    l = newlab("init")
    a(f"""v_mov_b32 {v(M)}, 0
v_mov_b32 {v(M+1)}, 0
v_mov_b32 {v(M+2)}, 0
v_mov_b32 {v(M+3)}, 0
s_lshl_b32 {s(t0)}, s2, 10
s_cmp_lt_u32 s2, {NINIT}
s_cselect_b32 {s(sO1)}, {s(sW)}, 0
s_cmp_eq_u32 {s(sO1)}, 3
s_cbranch_scc0 {l}""")
    a.cond = True
    a(f"buffer_store_dwordx4 {v(M,4)}, {v(vL16)}, {s(RWS,4)}, {s(t0)} offen sc1", tag="INIT")
    a.cond = False
    a(f"{l}:")
    a(f"""s_lshl_b32 {s(sW1K)}, {s(sW)}, 10
s_mul_i32 {s(t0)}, {s(sW)}, {16*2688}
s_mul_i32 {s(t1)}, {s(sH)}, 56
s_add_u32 {s(t0)}, {s(t0)}, {s(t1)}
s_add_u32 {s(t1)}, {s(t0)}, {7*64*2688}
s_mul_i32 {s(sWO)}, {s(sROT)}, {64*2688}
s_add_u32 {s(sWO)}, {s(sWO)}, {s(t0)}""")
    for c in range(1, 7):
        a(f"s_add_u32 {s(sWO+c)}, {s(sWO+c-1)}, {64*2688}\ns_cmp_eq_u32 {s(sWO+c)}, {s(t1)}\ns_cselect_b32 {s(sWO+c)}, {s(t0)}, {s(sWO+c)}")
    a(f"""s_mov_b32 {s(sONES)}, 0x3f803f80
s_mov_b32 {s(sSELLO)}, 0x00003f80
s_mov_b32 {s(sSELHI)}, 0x3f800000
s_mov_b32 {s(sL2E)}, {f2u(LOG2E)}
v_and_b32 v6, 31, v0
v_lshrrev_b32 v7, 5, v0
v_bfe_u32 v8, v0, 1, 3
v_xor_b32 v8, v8, v7
v_lshlrev_b32 v8, 4, v8
v_lshl_add_u32 v6, v6, 7, v8
v_add_u32 {v(vAX)}, {s(sWB)}, v6
v_add_u32 {v(vMLO)}, -1, v7
v_and_b32 {v(vMF)}, 1.0, {v(vMLO)}
v_lshrrev_b32 {v(vWOF)}, 2, v0
v_mul_u32_u24 {v(vWOF)}, 2688, {v(vWOF)}
v_and_b32 v8, 3, v0
v_lshlrev_b32 v9, 4, v8
v_min_u32 v9, 40, v9
v_add_u32 {v(vWOF)}, {v(vWOF)}, v9
v_bfe_u32 v9, v0, 4, 1
v_lshl_add_u32 v8, v9, 2, v8
v_bfe_u32 v9, v0, 2, 2
v_lshl_add_u32 {v(M+4)}, v7, 2, v9
v_mul_u32_u24 {v(M+4)}, 56, {v(M+4)}
v_min_u32 {v(M+5)}, 6, v8
v_lshl_add_u32 {v(M+4)}, {v(M+5)}, 3, {v(M+4)}
v_add_u32 {v(M+4)}, {WPHI}, {v(M+4)}
v_lshl_add_u32 v9, v7, 3, v9
v_xor_b32 {v(M+5)}, 1, v8
v_cmp_le_u32 vcc, 6, v8
v_cndmask_b32 v8, v8, {v(M+5)}, vcc
v_lshlrev_b32 v8, 3, v8
v_lshl_add_u32 {v(vAW)}, v9, 6, v8
v_add_u32 {v(vAWK)}, {R[4]}, {v(vAW)}
v_xor_b32 {v(vAX+1)}, 32, {v(vAX)}
v_xor_b32 {v(vAX+2)}, 64, {v(vAX)}
v_xor_b32 {v(vAX+3)}, 96, {v(vAX)}""")
    def wdma(m, c, region):
        mcol = {"q": 0, "k": 896, "v": 1792}[m]
        q = a.sub()
        q(f"s_add_u32 m0, {s(sW1K)}, {region + c*4096 - mcol}" if region + c*4096 - mcol >= 0 else
          f"s_add_u32 m0, {s(sW1K)}, {region + c*4096}\ns_add_u32 {s(t0)}, {s(sWO+c)}, {mcol}")
        if region + c*4096 - mcol >= 0:
            q(f"buffer_load_dwordx4 {v(vWOF)}, {s(RW,4)}, {s(sWO+c)} offen offset:{mcol} lds", tag=f"{m}{c}")
        else:
            q(f"buffer_load_dwordx4 {v(vWOF)}, {s(RW,4)}, {s(t0)} offen lds", tag=f"{m}{c}")
        return q
    def pdma():
        q = a.sub()
        q(f"""s_and_b32 {s(t0)}, {s(sW1K)}, 1024
s_add_u32 m0, {s(t0)}, {WPHI}
s_mul_i32 {s(t1)}, {s(sH)}, 1568
s_add_u32 {s(t0)}, {s(t0)}, {s(t1)}""")
        q(f"buffer_load_dwordx4 {v(vL16)}, {s(RP,4)}, {s(t0)} offen lds", tag="phi")
        return q
    for c in range(7):
        a.wvm(f"X{c}")
        for q in range(4):
            a(f"ds_read_b128 {v(XF+16*c+4*q,4)}, {v(vAX+q)} offset:{c*4096}", tag=f"xr{c}")
        if c < 4: a.add(xdma(c + 3))
        elif c == 4:
            a.add(pdma())
            for k in range(3): a.add(wdma("k", k, R[4]))
        elif c == 5:
            for k in range(3, 7): a.add(wdma("k", k, R[4]))
        if c == 3:
            l = newlab("init2")
            a(f"s_cmp_eq_u32 {s(sO1)}, 3\ns_cbranch_scc0 {l}")
            a.cond = True
            a(f"s_mov_b32 {s(sCV)}, 1\ns_atomic_add {s(sCV)}, {s(pDBG,2)}, 0")
            a.cond = False
            a(f"{l}:")
        a.wlg(f"xr{c}")
        if c == 6:
            a("s_barrier")
            for k in range(4): a.add(wdma("v", k, R[0]))
        for r in range(16):
            a(f"v_dot2c_f32_bf16 {v(M)}, {s(sONES)}, {v(XF+16*c+r)}\nv_dot2c_f32_bf16 {v(M+1)}, {v(XF+16*c+r)}, {v(XF+16*c+r)}")
    stamp("x_done")
    a(f"""v_permlane32_swap_b32 {v(M)}, {v(M+1)}
v_add_f32 {v(M)}, {v(M)}, {v(M+1)}
v_mul_f32 {v(M)}, {f2u(1/448)}, {v(M)}
v_mov_b32 {v(M+1)}, {v(M)}
v_permlane32_swap_b32 {v(M)}, {v(M+1)}
v_fma_f32 {v(M+1)}, -{v(M)}, {v(M)}, {v(M+1)}
v_max_f32 {v(M+1)}, 0, {v(M+1)}
v_add_f32 {v(M+1)}, {f2u(1e-5)}, {v(M+1)}
v_rsq_f32 {v(M+1)}, {v(M+1)}
v_cvt_pk_bf16_f32 {v(M+1)}, {v(M+1)}, {v(M+1)}
v_and_b32 {v(M+2)}, 0xffff0000, {v(M+1)}
v_and_b32 {v(M+1)}, 0xffff, {v(M+1)}
v_mul_f32 {v(M)}, {v(M)}, {v(M+2)}
v_sub_f32 {v(M)}, 0, {v(M)}""")
    nrm = a.sub()
    TP = PK
    for r in range(112 + 2):
        if r < 112:
            k = TP + 2 * (r % 4)
            nrm(f"v_dot2_f32_bf16 {v(k)}, {v(XF+r)}, {v(M+1)}, {v(M)}\nv_dot2_f32_bf16 {v(k+1)}, {v(XF+r)}, {v(M+2)}, {v(M)}")
        if r >= 2:
            k = TP + 2 * ((r - 2) % 4)
            nrm(f"v_cvt_pk_bf16_f32 {v(XF+r-2)}, {v(k)}, {v(k+1)}")
    fill = [wdma("v", k, R[0]) for k in range(4, 7)] + [wdma("q", k, R[1]) for k in range(7)]
    a.add(spread(nrm, fill, 30))
    stamp("norm_done")

    def gemm(m, addr, base, acc, x_is_b=True):
        g = a.sub()
        def rd(sp):
            for u in range(2):
                g(f"ds_read_b64_tr_b16 {v(WR+4*(sp%8)+2*u,2)}, {v(addr)} offset:{base+sp*1024+u*256}", tag=f"{m}f{sp}")
        PD = 5
        for sp in range(PD): rd(sp)
        for sp in range(28):
            g.wlg(f"{m}f{sp}")
            wf, xf = v(WR+4*(sp%8),4), v(XF+4*sp,4)
            A, B = (wf, xf) if x_is_b else (xf, wf)
            g(f"{MF} {v(acc,16)}, {A}, {B}, {v(acc,16) if sp else 0}")
            if sp + PD < 28: rd(sp + PD)
        return g

    WPF = M + 6
    def softmax(acc, plain):
        hd = a.sub(); b = a.sub()
        for k in range(8): hd(f"v_cvt_pk_bf16_f32 {v(EM+k)}, {v(acc+2*k)}, {v(acc+2*k+1)}")
        hd(f"{MF} {v(PK,16)}, {v(WPF,4)}, {v(EM,4)}, 0")
        hd(f"{MF} {v(PK,16)}, {v(WPF+4,4)}, {v(EM+4,4)}, {v(PK,16)}")
        mx, mn, u0, u1 = acc, acc + 1, acc + 2, acc + 3
        b(f"v_max3_f32 {v(mx)}, {v(PK)}, {v(PK+1)}, {v(PK+2)}\nv_min3_f32 {v(mn)}, {v(PK)}, {v(PK+1)}, {v(PK+2)}")
        for k in range(3, 15, 2):
            b(f"v_max3_f32 {v(mx)}, {v(mx)}, {v(PK+k)}, {v(PK+k+1)}\nv_min3_f32 {v(mn)}, {v(mn)}, {v(PK+k)}, {v(PK+k+1)}")
        b(f"""v_max_f32 {v(mx)}, {v(mx)}, {v(PK+15)}
v_min_f32 {v(mn)}, {v(mn)}, {v(PK+15)}
v_sub_f32 {v(mn)}, 0, {v(mn)}
v_permlane32_swap_b32 {v(mx)}, {v(mn)}
v_max_f32 {v(mx)}, {v(mx)}, {v(mn)}
v_mul_f32 {v(mx)}, {f2u(-LOG2E)}, {v(mx)}
v_mov_b32 {v(mn)}, {v(mx)}
v_permlane32_swap_b32 {v(mx)}, {v(mn)}""")
        for k in range(16):
            b(f"v_fma_f32 {v(EM+k)}, -{v(PK+k)}, {s(sL2E)}, {v(mn)}\nv_fma_f32 {v(PK+k)}, {v(PK+k)}, {s(sL2E)}, {v(mx)}")
        for k in range(16):
            b(f"v_exp_f32 {v(PK+k)}, {v(PK+k)}\nv_exp_f32 {v(EM+k)}, {v(EM+k)}")
        for (E, d0, d1) in ((PK, mx, u0), (EM, mn, u1)):
            b(f"v_add_f32 {v(d0)}, {v(E)}, {v(E+1)}\nv_add_f32 {v(d1)}, {v(E+12)}, {v(E+13)}")
        for k in range(2, 12):
            b(f"v_add_f32 {v(mx)}, {v(mx)}, {v(PK+k)}\nv_add_f32 {v(mn)}, {v(mn)}, {v(EM+k)}")
        for k in (14, 15):
            b(f"v_add_f32 {v(u0)}, {v(u0)}, {v(PK+k)}\nv_add_f32 {v(u1)}, {v(u1)}, {v(EM+k)}")
        b(f"""v_fmac_f32 {v(mx)}, {v(u0)}, {v(vMF)}
v_fmac_f32 {v(mn)}, {v(u1)}, {v(vMF)}
v_permlane32_swap_b32 {v(mx)}, {v(mn)}
v_add_f32 {v(mx)}, {v(mx)}, {v(mn)}
v_rcp_f32 {v(mx)}, {v(mx)}
v_mov_b32 {v(mn)}, {v(mx)}
v_permlane32_swap_b32 {v(mx)}, {v(mn)}""")
        for (E, rr, o) in ((PK, mx, PH), (EM, mn, PH + 8)):
            for k in range(8):
                b(f"v_mul_f32 {v(E+2*k)}, {v(E+2*k)}, {v(rr)}\nv_mul_f32 {v(E+2*k+1)}, {v(E+2*k+1)}, {v(rr)}")
                b(f"v_cvt_pk_bf16_f32 {v(o+k)}, {v(E+2*k)}, {v(E+2*k+1)}")
        return hd, b

    a.wvm("k6", "phi"); a("s_barrier")
    for sf in range(2):
        for u in range(2):
            a(f"ds_read_b64_tr_b16 {v(WPF+4*sf+2*u,2)}, {v(M+4)} offset:{(16*sf+8*u)*56}", tag="wp")
    aE, aEV, aT, aVR = vAX, vAX + 1, vAX + 2, vAX + 3
    pre = a.sub()
    pre(f"""s_mul_i32 {s(t0)}, {s(sW)}, {EXW}
s_add_u32 {s(t0)}, {s(t0)}, {R[4]}
v_lshrrev_b32 v2, 5, v0
v_lshl_add_u32 v3, v2, 6, {v(vL16)}
v_add_u32 {v(aE)}, {s(t0)}, v3
v_add_u32 {v(aEV)}, {s(t0)}, {v(vL16)}
v_add_u32 {v(aVR)}, {R[4]}, {v(vL16)}
s_lshr_b32 {s(t0)}, {s(sW)}, 1
s_mul_i32 {s(t0)}, {s(t0)}, 2304
s_add_u32 {s(t0)}, {s(t0)}, {R[4]}
v_bfe_u32 v3, v0, 2, 2
v_lshl_add_u32 v2, v2, 2, v3
v_lshlrev_b32 v2, 4, v2
v_bfe_u32 v3, v0, 4, 1
v_mul_u32_u24 v3, 1152, v3
v_add_u32 v2, v2, v3
v_and_b32 v3, 1, v0
v_mul_u32_u24 v3, 576, v3
v_add_u32 v2, v2, v3
v_bfe_u32 v3, v0, 1, 1
v_lshl_add_u32 v2, v3, 3, v2
v_add_u32 {v(aT)}, {s(t0)}, v2
v_and_b32 {v(WPF+6)}, {v(WPF+6)}, {v(vMLO)}
v_and_b32 {v(WPF+7)}, {v(WPF+7)}, {v(vMLO)}""")
    a.add(merge(gemm("k", vAWK, 0, AK), pre, start=2))
    stamp("k_done")
    hd, body = softmax(AK, True)
    a.add(hd)
    a.wvm("v6"); a("s_barrier")
    a.add(merge(gemm("v", vAW, R[0], AV, x_is_b=False), body, start=1))
    for k in (6, 7, 14, 15): a(f"v_and_b32 {v(PH+k)}, {v(PH+k)}, {v(vMLO)}")
    for f in range(4): a(f"ds_write_b128 {v(aE)}, {v(PH+4*f,4)} offset:{f*1152}")
    a(f"v_and_b32 v2, 31, v0\nv_cmp_eq_u32 vcc, 28, v2\nv_mov_b32 v3, {s(sONES)}")
    for k in range(8): a(f"v_cvt_pk_bf16_f32 {v(AV+k)}, {v(AV+2*k)}, {v(AV+2*k+1)}")
    for k in range(8): a(f"v_cndmask_b32 {v(AV+k)}, {v(AV+k)}, v3, vcc")
    for f in range(2): a(f"ds_write_b128 {v(aEV)}, {v(AV+4*f,4)} offset:{4608+f*1024}")
    a(f"global_load_dword {v(vT)}, {v(M+3)}, {s(pDBG,2)} sc1", tag="dbg")
    stamp("phik_done")
    a("s_waitcnt lgkmcnt(0)\ns_barrier")
    for ks in range(8):
        wq, sq = ks // 2, ks % 2
        for u in range(2):
            a(f"ds_read_b64_tr_b16 {v(WR+4*ks+2*u,2)}, {v(aT)} offset:{wq*EXW+(16*sq+8*u)*16}", tag=f"e{ks}")
        a(f"ds_read_b128 {v(PK+4*ks,4)}, {v(aVR)} offset:{wq*EXW+4608+sq*1024}", tag=f"e{ks}")
        if ks >= 3:
            a.wlg(f"e{ks-3}"); a(f"{MF} {v(AV,16)}, {v(WR+4*(ks-3),4)}, {v(PK+4*(ks-3),4)}, {v(AV,16) if ks>3 else 0}")
    a(f"""s_lshl_b32 {s(t0)}, {s(sH)}, 4
s_add_u32 {s(t0)}, {s(t0)}, {s(sRB)}
s_lshl_b32 {s(t0)}, {s(t0)}, 12
s_add_u32 {s(t0)}, {s(t0)}, {s(sW1K)}
s_add_u32 {s(sO1)}, {s(t0)}, {KVP}
s_bitcmp1_b32 {s(sW)}, 0
s_cselect_b64 vcc, -1, 0""")
    for ks in range(5, 8):
        a.wlg(f"e{ks}"); a(f"{MF} {v(AV,16)}, {v(WR+4*ks,4)}, {v(PK+4*ks,4)}, {v(AV,16)}")
    for k in range(8): a(f"v_cvt_pk_bf16_f32 {v(AV+k)}, {v(AV+2*k)}, {v(AV+2*k+1)}")
    for k in range(4): a(f"v_cndmask_b32 {v(AV+k)}, {v(AV+k)}, {v(AV+4+k)}, vcc")
    a(f"buffer_store_dwordx4 {v(AV,4)}, {v(vL16)}, {s(RWS,4)}, {s(sO1)} offen sc1", tag="kvst")
    stamp("kv_stored")
    roles34()
    for c, reg in ((0, 2), (1, 3), (2, 0)):
        for g in chunk_dma("O", c, R[reg]): a.add(g)
    def chk():
        lp, dn = newlab("ichk"), newlab("idone")
        a(f"""s_mov_b32 {s(sSPIN)}, 0
{lp}:
v_readfirstlane_b32 {s(sCV)}, {v(vT)}
s_add_u32 {s(sSPIN)}, {s(sSPIN)}, 1
s_cmp_ge_u32 {s(sCV)}, {NINIT}
s_cbranch_scc1 {dn}
global_load_dword {v(vT)}, {v(M+3)}, {s(pDBG,2)} sc1
s_cmp_lt_u32 {s(sSPIN)}, {SPIN_MAX}
s_waitcnt vmcnt(0)
s_cbranch_scc1 {lp}
{dn}:""")
    a.wvm("kvst")
    wave0(chk)
    a.wvm("kvst"); a("s_barrier")
    signal(C1, sH)
    stamp("sig1")
    for g in chunk_dma("O", 3, R[4]): a.add(g)
    XR = AV
    a(f"""v_and_b32 v2, 31, v0
v_mul_u32_u24 v2, 896, v2
v_lshrrev_b32 v3, 5, v0
v_lshl_add_u32 v2, v3, 3, v2
s_mul_i32 {s(t0)}, {s(sTT)}, {RS}
s_lshl_b32 {s(t1)}, {s(sNT)}, 6
s_add_u32 {s(t0)}, {s(t0)}, {s(t1)}""")
    for j in range(4):
        a(f"buffer_load_dwordx2 {v(XR+2*j,2)}, v2, {s(RX,4)}, {s(t0)} offen offset:{16*j}", tag="xres")
    a.add(gemm("q", vAW, R[1], AK))
    hd, body = softmax(AK, False)
    a.add(hd); a.add(body)
    stamp("phiq_done")

vPO, vPG = 4, 5
vAP, vAP2, vAPC, vAPC2 = 6, 7, 8, 9
vAP4, vAPC4 = 11, 12
sOB, sGB = 64, 65
def roles34():
    a(f"""s_lshl_b32 {s(sTT)}, {s(sXCD)}, 3
s_lshr_b32 {s(t0)}, {s(sI)}, 2
s_add_u32 {s(sTT)}, {s(sTT)}, {s(t0)}
s_and_b32 {s(sCG)}, {s(sI)}, 3
s_and_b32 {s(t0)}, {s(sW)}, 1
s_cmp_eq_u32 {s(sCG)}, 3
s_cselect_b32 {s(t0)}, {s(t0)}, {s(sW)}
s_cselect_b32 {s(t1)}, 7, 15
s_lshl_b32 {s(sNT)}, {s(sCG)}, 2
s_add_u32 {s(sNT)}, {s(sNT)}, {s(t0)}
v_lshrrev_b32 v2, 4, v0
v_lshlrev_b32 v3, 2, v2
v_xor_b32 v3, v3, v0
v_and_b32 {v(vPO)}, {s(t1)}, v3
v_and_b32 {v(vPG)}, 15, v3
v_lshlrev_b32 {v(vPO)}, 4, {v(vPO)}
v_lshlrev_b32 {v(vPG)}, 4, {v(vPG)}
v_mul_u32_u24 v3, 896, v2
v_add_u32 {v(vPO)}, {v(vPO)}, v3
v_mul_u32_u24 v3, 3584, v2
v_add_u32 {v(vPG)}, {v(vPG)}, v3
s_mul_i32 {s(sOB)}, {s(sW)}, {4*896}
s_lshl_b32 {s(t0)}, {s(sCG)}, 8
s_add_u32 {s(sOB)}, {s(sOB)}, {s(t0)}
s_min_u32 {s(t0)}, {s(sI)}, 27
s_mul_i32 {s(sROT4)}, {s(t0)}, 37
s_lshr_b32 {s(sROT4)}, {s(sROT4)}, 8
s_mul_i32 {s(t1)}, {s(sROT4)}, 7
s_sub_u32 {s(sCT)}, {s(t0)}, {s(t1)}
s_and_b32 {s(sHALF)}, {s(sXCD)}, 1
s_mul_i32 {s(sFS)}, {s(sHALF)}, 7
s_add_u32 {s(sFS)}, {s(sFS)}, {s(sCT)}
s_lshr_b32 {s(sRB4)}, {s(sXCD)}, 1
s_lshl_b32 {s(sRB4)}, {s(sRB4)}, 2
s_add_u32 {s(sRB4)}, {s(sRB4)}, {s(sROT4)}
s_mul_i32 {s(sGB)}, {s(sW)}, {4*3584}
s_lshl_b32 {s(t0)}, {s(sFS)}, 8
s_add_u32 {s(sGB)}, {s(sGB)}, {s(t0)}""")
    srd(RO, pWO, 448 * 896); srd(RG, pWG, 448 * 3584); srd(RU, pWU, 448 * 3584)

def chunk_dma(m, c, region):
    out = []
    pitch = 896 if m == "O" else 3584
    for j in range(7):
        q = a.sub()
        if j == 0:
            if m == "O":
                q(f"s_add_u32 {s(sO2)}, {s(sOB)}, {c*112*pitch}")
            else:
                q(f"s_add_u32 {s(sO2)}, {s(sROT4)}, {c}\ns_and_b32 {s(sO2)}, {s(sO2)}, 3\ns_mul_i32 {s(sO2)}, {s(sO2)}, {112*pitch}\ns_add_u32 {s(sO2)}, {s(sO2)}, {s(sGB)}")
        q(f"s_add_u32 m0, {s(sW1K)}, {region + j*4096}")
        if j > 0: q(f"s_add_u32 {s(sO2)}, {s(sO2)}, {16*pitch}")
        rs = {"O": RO, "G": RG, "U": RU}[m]
        q(f"buffer_load_dwordx4 {v(vPO if m == 'O' else vPG)}, {s(rs,4)}, {s(sO2)} offen lds", tag=f"{m}{c}")
        out.append(q)
    return out

def chunk_addrs():
    a(f"""v_bfe_u32 v2, v0, 2, 2
v_xor_b32 v3, {s(sW)}, v2
v_lshlrev_b32 v3, 6, v3
v_lshl_add_u32 v3, v2, 8, v3
v_bfe_u32 v2, v0, 4, 1
v_lshl_add_u32 v3, v2, 5, v3
v_and_b32 v2, 3, v0
v_lshl_add_u32 {v(vAPC)}, v2, 3, v3
v_lshrrev_b32 v2, 5, v0
v_lshl_add_u32 {v(vAP)}, v2, 10, {v(vAPC)}
v_add_u32 {v(vAP2)}, {R[2]}, {v(vAP)}
v_add_u32 {v(vAPC2)}, {R[2]}, {v(vAPC)}
v_add_u32 {v(vAP4)}, {R[4]}, {v(vAP)}
v_add_u32 {v(vAPC4)}, {R[4]}, {v(vAPC)}""")

WOF = 16
def chunk_read(m, c, reg):
    q = a.sub()
    ad, adc, off = {0: (vAP, vAPC, 0), 1: (vAP, vAPC, RS), 2: (vAP2, vAPC2, 0), 3: (vAP2, vAPC2, RS), 4: (vAP4, vAPC4, 0)}[reg]
    if m == "O":
        for hl in range(4):
            for sf in range(2):
                for u in range(2):
                    d = WOF + 4 * (8 * c + 2 * hl + sf) + 2 * u
                    q(f"ds_read_b64_tr_b16 {v(d,2)}, {v(adc if (sf and u) else ad)} offset:{off + (28*hl+16*sf+8*u)*256}", tag=f"r{m}{c}")
    else:
        base = 0 if m == "G" else 112
        for sl in range(7):
            for u in range(2):
                q(f"ds_read_b64_tr_b16 {ag(base+4*(7*c+sl)+2*u,2)}, {v(ad)} offset:{off + (16*sl+8*u)*256}", tag=f"r{m}{c}")
    return q

CSG, CSU = 224, 228
def colsum(m, acc, ones):
    base, dst = (0, CSG) if m == "G" else (112, CSU)
    for k in range(4): a(f"v_mov_b32 {v(ones+k)}, {s(sONES)}")
    for sp in range(28):
        a(f"{MF} {v(acc,16)}, {v(ones,4)}, {ag(base+4*sp,4)}, {v(acc,16) if sp else 0}")
    a(f"""v_cvt_pk_bf16_f32 {v(ones)}, {v(acc)}, {v(acc)}
v_and_b32 {v(ones+1)}, 0xffff0000, {v(ones)}
v_sub_f32 {v(ones+1)}, {v(acc)}, {v(ones+1)}
v_cvt_pk_bf16_f32 {v(ones+1)}, {v(ones+1)}, 0
v_and_b32 {v(ones)}, {v(ones)}, {v(vMLO)}
v_and_b32 {v(ones+1)}, {v(ones+1)}, {v(vMLO)}
v_accvgpr_write_b32 {ag(dst)}, {v(ones)}
v_accvgpr_write_b32 {ag(dst+1)}, {v(ones+1)}
v_accvgpr_write_b32 {ag(dst+2)}, 0
v_accvgpr_write_b32 {ag(dst+3)}, 0""")

PL = 144
AH = 208
SUM = 240
def p2():
    XR = AV
    chunk_addrs()
    a.wvm("xres", "O3")
    for k in range(8):
        a(f"v_lshlrev_b32 {v(AH+2*k)}, 16, {v(XR+k)}\nv_and_b32 {v(AH+2*k+1)}, 0xffff0000, {v(XR+k)}")
    a("s_barrier")
    for c, reg in ((0, 2), (1, 3), (2, 0), (3, 4)): a.add(chunk_read("O", c, reg))
    for k in range(8): a(f"v_mov_b32 {v(SUM+k)}, 0")
    a(f"""s_lshl_b32 {s(sO1)}, {s(sH)}, 16
s_add_u32 {s(sO1)}, {s(sO1)}, {s(sW1K)}
s_add_u32 {s(sO1)}, {s(sO1)}, {KVP}
s_lshl_b32 {s(t1)}, {s(sRB)}, 13
s_waitcnt lgkmcnt(0)""")
    stamp("wo_read")
    poll(C1, sH, 16)
    a("s_barrier")
    stamp("sync1")
    for p in range(16):
        a(f"s_and_b32 {s(t1)}, {s(t1)}, 0xffff\ns_add_u32 {s(t0)}, {s(sO1)}, {s(t1)}")
        a(f"buffer_load_dwordx4 {v(PL+4*p,4)}, {v(vL16)}, {s(RWS,4)}, {s(t0)} offen sc1", tag=f"P{p}")
        a(f"s_add_u32 {s(t1)}, {s(t1)}, 4096")
    gd = []
    for c in range(2): gd += chunk_dma("G", c, R[c])
    for p in range(16):
        a.wvm(f"P{p}")
        for k in range(4):
            a(f"v_dot2c_f32_bf16 {v(SUM+2*k)}, {s(sSELLO)}, {v(PL+4*p+k)}\nv_dot2c_f32_bf16 {v(SUM+2*k+1)}, {s(sSELHI)}, {v(PL+4*p+k)}")
        if p < len(gd): a.add(gd[p])
    a(f"v_add_u32 v2, {KVF}, {v(vL16)}\nv_add_u32 v3, {s(sW1K)}, v2")
    for k in range(4): a(f"v_cvt_pk_bf16_f32 {v(SUM+k)}, {v(SUM+2*k)}, {v(SUM+2*k+1)}")
    a(f"ds_write_b128 v3, {v(SUM,4)}\ns_waitcnt lgkmcnt(0)\ns_barrier")
    KF, NU = PL, PL + 16
    for f in range(4): a(f"ds_read_b128 {v(KF+4*f,4)}, v2 offset:{f*1024}", tag=f"kf{f}")
    a(f"""s_lshl_b32 {s(t0)}, {s(sRB)}, 2
s_add_u32 {s(t0)}, {s(t0)}, {s(sW)}
s_lshl_b32 {s(t0)}, {s(t0)}, 4
s_add_u32 {s(t0)}, {s(t0)}, {s(sH)}
s_lshl_b32 {s(t0)}, {s(t0)}, 11
s_add_u32 {s(sO1)}, {s(t0)}, {OB}""")
    for f in range(4):
        a.wlg(f"kf{f}"); a(f"{MF} {v(NU,16)}, {v(KF+4*f,4)}, {v(PH+4*f,4)}, {v(NU,16) if f else 0}")
    a(f"""v_add_f32 v2, {f2u(1e-6)}, {v(NU+12)}
v_rcp_f32 v2, v2
v_mov_b32 v3, v2
v_permlane32_swap_b32 v2, v3
v_mov_b32 v2, v3""")
    for k in range(8):
        a(f"v_pk_mul_f32 {v(NU+2*k,2)}, {v(NU+2*k,2)}, v[2:3]")
    for k in range(8): a(f"v_cvt_pk_bf16_f32 {v(KF+k)}, {v(NU+2*k)}, {v(NU+2*k+1)}")
    a(f"v_and_b32 {v(KF+6)}, {v(KF+6)}, {v(vMLO)}\nv_and_b32 {v(KF+7)}, {v(KF+7)}, {v(vMLO)}")
    for f in range(2):
        a(f"buffer_store_dwordx4 {v(KF+4*f,4)}, {v(vL16)}, {s(RWS,4)}, {s(sO1)} offen offset:{f*1024} sc1", tag="ost")
    stamp("o_stored")
    for c in range(2, 4):
        for g in chunk_dma("G", c, R[c]): a.add(g)
    a.wvm("ost"); a("s_barrier")
    signal(C2, sRB)
    stamp("sig2")
    for c in range(2): a.add(chunk_read("G", c, c))
    a.wvm("G3"); a("s_barrier")
    for c in range(2, 4): a.add(chunk_read("G", c, c))
    a("s_waitcnt lgkmcnt(0)")
    colsum("G", PL, PL + 16)
    stamp("g_read")

def p3():
    a(f"""s_lshr_b32 {s(t2)}, {s(sTT)}, 2
s_lshl_b32 {s(sO1)}, {s(sTT)}, 15
s_lshl_b32 {s(t3)}, {s(sW)}, 12
s_add_u32 {s(sO1)}, {s(sO1)}, {s(t3)}
s_add_u32 {s(sO1)}, {s(sO1)}, {OB}
v_add_u32 v2, {R[4]}, {v(vL16)}""")
    poll(C2, t2, 16)
    a("s_barrier")
    stamp("sync2")
    for g in range(2):
        a(f"s_add_u32 m0, {s(t3)}, {R[4] + g*16384}")
        if g: a(f"s_add_u32 {s(sO1)}, {s(sO1)}, 16384")
        for j in range(4):
            a(f"buffer_load_dwordx4 {v(vL16)}, {s(RWS,4)}, {s(sO1)} offen offset:{j*1024} sc1 lds", tag=f"ot{g}")
    ud = []
    for c in range(2): ud += chunk_dma("U", c, R[c])
    for g_ in ud[:4]: a.add(g_)
    a(f"""s_mul_i32 {s(t0)}, {s(sTT)}, {RS}
s_lshl_b32 {s(t1)}, {s(sNT)}, 11
s_add_u32 {s(t0)}, {s(t0)}, {s(t1)}
s_add_u32 {s(sO1)}, {s(t0)}, {HB}
s_mul_i32 {s(t0)}, {s(sTT)}, 14
s_add_u32 {s(t0)}, {s(t0)}, {s(sNT)}
s_lshl_b32 {s(t0)}, {s(t0)}, 8
s_add_u32 {s(t3)}, {s(t0)}, {ST}
v_mov_b32 {v(SUM)}, 0
v_mov_b32 {v(SUM+1)}, 0
v_lshlrev_b32 v3, 2, v0""")
    g = a.sub()
    for half in range(2):
        g.wvm(f"ot{half}"); g("s_barrier")
        def rd(ks): g(f"ds_read_b128 {v(PL+4*(ks%16),4)}, v2 offset:{ks*1024}", tag=f"of{ks}")
        PD = 6
        for ks in range(16*half, 16*half + PD): rd(ks)
        for ks in range(16*half, 16*half + 16):
            g.wlg(f"of{ks}")
            g(f"{MF} {v(AH,16)}, {v(WOF+4*ks,4)}, {v(PL+4*(ks%16),4)}, {v(AH,16)}")
            if ks + PD < 16*half + 16: rd(ks + PD)
    fl = a.sub()
    for g_ in ud[4:]: fl.add(g_)
    a.add(merge(g, fl, budget=28))
    for k in range(8): a(f"v_cvt_pk_bf16_f32 {v(PL+k)}, {v(AH+2*k)}, {v(AH+2*k+1)}")
    for f in range(2):
        a(f"buffer_store_dwordx4 {v(PL+4*f,4)}, {v(vL16)}, {s(RWS,4)}, {s(sO1)} offen offset:{f*1024} sc1", tag="hst")
    for k in range(8):
        a(f"v_dot2c_f32_bf16 {v(SUM)}, {s(sONES)}, {v(PL+k)}\nv_dot2c_f32_bf16 {v(SUM+1)}, {v(PL+k)}, {v(PL+k)}")
    a(f"v_permlane32_swap_b32 {v(SUM)}, {v(SUM+1)}\nv_add_f32 {v(SUM)}, {v(SUM)}, {v(SUM+1)}")
    a(f"buffer_store_dword {v(SUM)}, v3, {s(RWS,4)}, {s(t3)} offen sc1", tag="hst")
    stamp("h_stored")
    for c in range(2, 4):
        for g_ in chunk_dma("U", c, R[c]): a.add(g_)
    a.wvm("hst"); a("s_barrier")
    signal(C3, t2)
    a(f"s_cmp_ge_u32 {s(sI)}, 28\ns_cbranch_scc1 L_fin")
    stamp("sig3")
    for c in range(2): a.add(chunk_read("U", c, c))
    a.wvm("U3"); a("s_barrier")
    for c in range(2, 4): a.add(chunk_read("U", c, c))
    a("s_waitcnt lgkmcnt(0)")
    colsum("U", PL, PL + 16)
    stamp("u_read")

AC = 16
BR = 80
SR = 96
HR = 104
vH0, vH2, vSX = 2, 3, 4
vDO, vAD0, vAD1 = 5, 6, 7
def p4():
    a(f"""s_lshl_b32 {s(t2)}, {s(sRB4)}, 2
s_add_u32 {s(t0)}, {s(sW)}, {s(sROT4)}
s_and_b32 {s(t0)}, {s(t0)}, 3
s_mul_i32 {s(t0)}, {s(t0)}, 7168
s_mul_i32 {s(sO1)}, {s(t2)}, {RS}
s_add_u32 {s(sO1)}, {s(sO1)}, {s(t0)}
s_add_u32 {s(sO1)}, {s(sO1)}, {HB}
s_mul_i32 {s(t3)}, {s(sW)}, 7168
s_add_u32 {s(t1)}, {s(t2)}, {s(sW)}
s_mul_i32 {s(t1)}, {s(t1)}, {14*256}
s_add_u32 {s(sO2)}, {s(t1)}, {ST}
v_lshlrev_b32 v8, 2, v0
v_add_u32 {v(vH2)}, {R[2]}, {v(vL16)}
v_add_u32 {v(vSX)}, {STX}, {v(vL16)}""")
    poll(C3, sRB4, 16)
    a("s_barrier")
    stamp("sync3")
    def hdma(i):
        q = a.sub()
        for g in range(2):
            q(f"s_add_u32 m0, {s(t3)}, {R[i] + g*4096}")
            q(f"s_add_u32 {s(t0)}, {s(sO1)}, {i*RS + g*4096}")
            for j in range(4 - g):
                q(f"buffer_load_dwordx4 {v(vL16)}, {s(RWS,4)}, {s(t0)} offen offset:{j*1024} sc1 lds", tag=f"h{i}")
        return q
    a.add(hdma(0))
    SL = AC + 32
    for n in range(14):
        a(f"buffer_load_dword {v(SL+n)}, v8, {s(RWS,4)}, {s(sO2)} offen offset:{n*256} sc1", tag="stl")
    a.add(hdma(1))
    a(f"""s_mul_i32 {s(t0)}, {s(t2)}, {112*1024}
s_lshl_b32 {s(t1)}, {s(sFS)}, 13
s_add_u32 {s(t0)}, {s(t0)}, {s(t1)}
s_lshl_b32 {s(t1)}, {s(sW)}, 11
s_add_u32 {s(t0)}, {s(t0)}, {s(t1)}
s_add_u32 {s(sO2)}, {s(t0)}, {ACT}""")
    st = a.sub()
    st.wvm("stl")
    for n in range(1, 14): st(f"v_add_f32 {v(SL)}, {v(SL)}, {v(SL+n)}")
    st(f"""v_mul_f32 {v(SL)}, {f2u(1/448)}, {v(SL)}
v_mov_b32 {v(SL+1)}, {v(SL)}
v_permlane32_swap_b32 {v(SL)}, {v(SL+1)}
v_fma_f32 {v(SL+1)}, -{v(SL)}, {v(SL)}, {v(SL+1)}
v_max_f32 {v(SL+1)}, 0, {v(SL+1)}
v_add_f32 {v(SL+7)}, {f2u(1e-5)}, {v(SL+1)}
v_rsq_f32 {v(SL+6)}, {v(SL+7)}
v_sub_f32 {v(SL)}, 0, {v(SL)}
v_mul_f32 {v(SL+6)}, {f2u(-LOG2E)}, {v(SL+6)}
v_cvt_pk_bf16_f32 {v(SL+5)}, {v(SL)}, 0
v_lshlrev_b32 {v(SL+2)}, 16, {v(SL+5)}
v_sub_f32 {v(SL+2)}, {v(SL)}, {v(SL+2)}
v_cvt_pk_bf16_f32 {v(SL+4)}, {v(SL)}, {v(SL+2)}
v_and_b32 {v(SL+6)}, 0xffffff7f, {v(SL+6)}
v_and_b32 {v(SL+7)}, 0xffffff7f, {v(SL+7)}
v_add_u32 v8, {s(sW1K)}, {v(vSX)}""")
    st(f"ds_write_b128 v8, {v(SL+4,4)}", tag="stw")

    def epilogue(i):
        e = a.sub()
        G, U = AC + 32 * (i % 2), AC + 32 * (i % 2) + 16
        c1, s2 = SR + 4 * (i % 2) + 2, SR + 4 * (i % 2) + 3
        for k0 in range(0, 16, 4):
            ks = range(k0, k0 + 4)
            for k in ks: e(f"v_mul_f32 {v(U+k)}, {v(U+k)}, {v(G+k)}\nv_mul_f32 {v(G+k)}, {v(G+k)}, {v(c1)}")
            for k in ks: e(f"v_exp_f32 {v(G+k)}, {v(G+k)}")
            for k in ks: e(f"v_fma_f32 {v(G+k)}, {v(G+k)}, {v(s2)}, {v(s2)}")
            for k in ks: e(f"v_rcp_f32 {v(G+k)}, {v(G+k)}")
            for k in ks: e(f"v_mul_f32 {v(U+k)}, {v(U+k)}, {v(G+k)}")
            for k in (k0, k0 + 2): e(f"v_cvt_pk_bf16_f32 {v(G+k//2)}, {v(U+k)}, {v(U+k+1)}")
            if k0 % 8 == 4:
                f = k0 // 8
                if f == 0: e(f"s_add_u32 {s(t1)}, {s(sO2)}, {i*112*1024}")
                e(f"buffer_store_dwordx4 {v(G+4*f,4)}, {v(vL16)}, {s(RWS,4)}, {s(t1)} offen offset:{f*1024} sc1", tag=f"ast{i}")
        return e

    for i in range(4):
        g = a.sub()
        G, U = AC + 32 * (i % 2), AC + 32 * (i % 2) + 16
        ad, off = (vL16, R[i]) if i < 2 else (vH2, R[i] - R[2])
        g.wvm(f"h{i}"); g("s_barrier")
        def rd(sp): g(f"ds_read_b128 {v(BR+4*(sp%4),4)}, {v(ad)} offset:{off+sp*1024}", tag=f"hf{i}_{sp}")
        for sp in range(3): rd(sp)
        for sp in range(28):
            g.wlg(f"hf{i}_{sp}")
            g(f"{MF} {v(G,16)}, {ag(4*sp,4)}, {v(BR+4*(sp%4),4)}, {v(G,16) if sp else 0}")
            if sp + 3 < 28: rd(sp + 3)
            if i == 0 and sp == 20:
                g.wlg("stw"); g("s_barrier")
            if sp == 22:
                g(f"ds_read_b128 {v(SR+4*(i%2),4)}, {v(vSX)} offset:{i*1024}", tag=f"sr{i}")
            g(f"{MF} {v(U,16)}, {ag(112+4*sp,4)}, {v(BR+4*(sp%4),4)}, {v(U,16) if sp else 0}")
        g.wlg(f"sr{i}")
        g(f"{MF} {v(G,16)}, {ag(CSG,4)}, {v(SR+4*(i%2),4)}, {v(G,16)}")
        g(f"{MF} {v(U,16)}, {ag(CSU,4)}, {v(SR+4*(i%2),4)}, {v(U,16)}")
        fl = a.sub()
        if i == 0:
            fl.add(hdma(2)); fl.add(st); fl.add(hdma(3))
            a.add(merge(g, fl, budget=28))
        else:
            a.add(merge(g, epilogue(i - 1), start=2))
        stamp(f"t{i}")
    a.add(epilogue(3))
    stamp("act_stored")

def p5():
    srd(RW, pWD, 1792 * 896); srd(RX, pOUT, 2048 * 896)
    a(f"""v_lshrrev_b32 v8, 3, v0
v_bfe_u32 v9, v0, 4, 1
v_lshlrev_b32 v9, 2, v9
v_xor_b32 v9, v9, v0
v_and_b32 v9, 7, v9
v_lshlrev_b32 v9, 4, v9
v_mul_u32_u24 v8, 896, v8
v_add_u32 {v(vDO)}, v8, v9
s_mul_i32 {s(t3)}, {s(sW)}, 40960
v_bfe_u32 v8, v0, 2, 2
v_lshrrev_b32 v9, 5, v0
v_lshl_add_u32 v9, v9, 2, v8
v_lshlrev_b32 v9, 7, v9
v_lshrrev_b32 v8, 1, v8
v_lshl_add_u32 v9, v8, 6, v9
v_bfe_u32 v8, v0, 4, 1
v_lshl_add_u32 v9, v8, 5, v9
v_and_b32 v8, 3, v0
v_lshl_add_u32 v9, v8, 3, v9
v_add_u32 {v(vAD0)}, {s(t3)}, v9
v_xor_b32 {v(vAD1)}, 64, {v(vAD0)}
s_mul_i32 {s(sO1)}, {s(sW)}, {448*896}
s_lshl_b32 {s(t0)}, {s(sCT)}, 7
s_add_u32 {s(sO1)}, {s(sO1)}, {s(t0)}""")
    a.wvm("ast3"); a("s_barrier")
    signal(C4, sRB4)
    stamp("sig4")
    def ddma(b):
        for j in range(2):
            a(f"s_add_u32 m0, {s(t3)}, {(b%20)*2048 + j*1024}\ns_add_u32 {s(t0)}, {s(sO1)}, {(16*b+8*j)*896}")
            a(f"buffer_load_dwordx4 {v(vDO)}, {s(RW,4)}, {s(t0)} offen lds", tag=f"D{b}")
    def dread(b):
        a.wvm(f"D{b}")
        for nt in range(2):
            for u in range(2):
                a(f"ds_read_b64_tr_b16 {ag(8*b+4*nt+2*u,2)}, {v(vAD0+nt)} offset:{(b%20)*2048+u*1024}", tag=f"dr{b}")
    a(f"""v_lshrrev_b32 v8, 3, v0
s_lshl_b32 {s(t0)}, {s(sW)}, 3
v_add_u32 v8, {s(t0)}, v8
v_bfe_u32 v9, v0, 1, 2
v_lshlrev_b32 v9, 10, v9
v_lshl_add_u32 v9, v8, 4, v9
v_and_b32 v10, 1, v0
v_lshl_add_u32 v9, v10, 3, v9
s_lshl_b32 {s(t2)}, {s(sRB4)}, 2
s_add_u32 {s(t2)}, {s(t2)}, {s(sHALF)}
s_mul_i32 {s(t0)}, {s(t2)}, {RS}
s_lshl_b32 {s(t1)}, {s(sCT)}, 12
s_add_u32 {s(t0)}, {s(t0)}, {s(t1)}
s_add_u32 {s(t0)}, {s(t0)}, {HB}
s_add_u32 {s(t1)}, {s(t0)}, {2*RS}""")
    for tb in range(2):
        for hh in range(2):
            a(f"buffer_load_dwordx2 {v(HR+4*tb+2*hh,2)}, v9, {s(RWS,4)}, {s(t0+tb)} offen offset:{hh*512} sc1", tag="hres")
    for b in range(6): ddma(b)
    for b in range(28):
        if b + 6 < 28:
            if b + 6 >= 20: a.wlg(f"dr{b+6-20}")
            ddma(b + 6)
        dread(b)
    vOUT, vRW, vRR = 10, 11, 12
    QS = 1088
    a(f"""v_mul_u32_u24 {v(vOUT)}, 896, v8
v_and_b32 v9, 7, v0
v_lshl_add_u32 {v(vOUT)}, v9, 4, {v(vOUT)}
v_mul_u32_u24 {v(vRR)}, {QS}, v9
v_lshl_add_u32 {v(vRR)}, v8, 4, {v(vRR)}
s_mul_i32 {s(t0)}, {s(sW)}, {8*QS}
v_add_u32 {v(vRW)}, {s(t0)}, {v(vL16)}
s_mul_i32 {s(sO1)}, {s(t2)}, {112*1024}
s_add_u32 {s(sO1)}, {s(sO1)}, {s(sWB)}
s_add_u32 {s(sO1)}, {s(sO1)}, {ACT}
s_mul_i32 {s(sO2)}, {s(t2)}, {RS}
s_lshl_b32 {s(t0)}, {s(sCT)}, 7
s_add_u32 {s(sO2)}, {s(sO2)}, {s(t0)}
s_waitcnt lgkmcnt(0)""")
    stamp("wd_read")
    poll(C4, sRB4, 14)
    a("s_barrier")
    stamp("sync4")
    AF = 112
    NS = 32
    def ald(n):
        tb, sp = n // 28, n % 28
        if sp % 4 == 0: a(f"s_add_u32 {s(t0)}, {s(sO1)}, {tb*2*112*1024 + sp*1024}")
        a(f"buffer_load_dwordx4 {v(AF+4*(n%NS),4)}, {v(vL16)}, {s(RWS,4)}, {s(t0)} offen offset:{(sp%4)*1024} sc1", tag=f"A{n}")
    PD = 12
    for n in range(PD): ald(n)
    def reduce_write(tb):
        for q in range(8):
            a(f"ds_write_b128 {v(vRW)}, {v(AC+32*tb+4*q,4)} offset:{tb*4*8*QS + q*QS}", tag=f"rw{tb}")
    def reduce_finish(tb):
        T = AC + 32 * tb
        a.wlg(f"rw{tb}"); a("s_barrier")
        for w in range(4):
            for hh in range(2):
                a(f"ds_read_b128 {v(T+8*w+4*hh,4)}, {v(vRR)} offset:{tb*4*8*QS + w*8*QS + hh*512}", tag=f"rr{tb}_{w}")
        a.wvm("hres")
        for k in range(4):
            a(f"v_lshlrev_b32 {v(BR+2*k)}, 16, {v(HR+4*tb+k)}\nv_and_b32 {v(BR+2*k+1)}, 0xffff0000, {v(HR+4*tb+k)}")
        for w in range(4):
            a.wlg(f"rr{tb}_{w}")
            for k in range(4): a(f"v_pk_add_f32 {v(BR+2*k,2)}, {v(BR+2*k,2)}, {v(T+8*w+2*k,2)}")
        for k in range(4): a(f"v_cvt_pk_bf16_f32 {v(BR+8+k)}, {v(BR+2*k)}, {v(BR+2*k+1)}")
        if tb: a(f"s_add_u32 {s(sO2)}, {s(sO2)}, {2*RS}")
        a(f"buffer_store_dwordx4 {v(BR+8,4)}, {v(vOUT)}, {s(RX,4)}, {s(sO2)} offen")
    for n in range(56):
        tb, sp = n // 28, n % 28
        if n + PD < 56: ald(n + PD)
        a.wvm(f"A{n}")
        for nt in range(2):
            acc = AC + 32 * tb + 16 * nt
            a(f"{MF} {v(acc,16)}, {ag(8*sp+4*nt,4)}, {v(AF+4*(n%NS),4)}, {v(acc,16) if sp else 0}")
        if n == 30: reduce_write(0)
        if n == 40: reduce_finish(0)
    reduce_write(1)
    reduce_finish(1)
    stamp("end")
    if STAMPS: a("s_memrealtime s[92:93]\ns_waitcnt lgkmcnt(0)\nv_writelane_b32 v255, s92, 61")

phases = [p1, p2, p3, p4, p5]
for k, p in enumerate(phases):
    p()
    if STOP == k + 1: break
a("L_fin:")
if STAMPS:
    a(f"""s_lshl_b32 {s(t0)}, s2, 2
s_add_u32 {s(t0)}, {s(t0)}, {s(sW)}
s_lshl_b32 {s(t0)}, {s(t0)}, 8
s_add_u32 {s(t0)}, {s(t0)}, {STAMP_OFF}
s_waitcnt vmcnt(0)
s_memrealtime s[92:93]
s_waitcnt lgkmcnt(0)
v_writelane_b32 v255, s92, 62
v_lshlrev_b32 v2, 2, v0
buffer_store_dword v255, v2, {s(RWS,4)}, {s(t0)} offen
s_add_u32 {s(t0)}, {s(t0)}, 0x40000
buffer_store_dword v254, v2, {s(RWS,4)}, {s(t0)} offen""")
a("L_end:\ns_endpgm")

hdr = open(f"cdna_kernels/{NAME}.s.ref").read().split("; Override launch")[0]
txt = hdr + f"""; @launch grid=(256,1,1) block=(256,1,1) lds={LDS_BYTES}
.amdgcn_target "amdgcn-amd-amdhsa--gfx950"
.text
.globl {NAME}_kernel
.p2align 8
.type {NAME}_kernel,@function
{NAME}_kernel:
""" + finalize(a, verbose=True) + f""".section .rodata,"a"
.p2align 6
.amdhsa_kernel {NAME}_kernel
  .amdhsa_next_free_vgpr 512
  .amdhsa_next_free_sgpr 102
  .amdhsa_accum_offset 256
  .amdhsa_group_segment_fixed_size 0
  .amdhsa_kernarg_size 88
  .amdhsa_user_sgpr_count 2
  .amdhsa_user_sgpr_kernarg_segment_ptr 1
  .amdhsa_system_sgpr_workgroup_id_x 1
.end_amdhsa_kernel
"""
open(OUT, "w").write(txt)
if STAMPS: open(OUT + ".names", "w").write("\n".join(STAMP_NAMES))
```
